```python
import torch

def _softmax(x, axis=-1):
    return torch.softmax(x, dim=axis)
def _gelu(x):
    return torch.nn.functional.gelu(x, approximate="tanh")
def _silu(x):
    return torch.nn.functional.silu(x)
def _sigmoid(x):
    return torch.sigmoid(x)
def _layernorm(x, axis=-1, eps=1e-5):
    m = x.mean(dim=axis, keepdim=True)
    v = x.var(dim=axis, keepdim=True, unbiased=False)
    return (x - m) / torch.sqrt(v + eps)
def _scatter_add(tgt, idx, src, axis=0):
    return tgt.clone().index_add_(axis, idx, src)
def _segment_sum(src, seg, n):
    out = torch.zeros((n,) + src.shape[1:], dtype=src.dtype)
    return out.index_add_(0, seg, src)
def _pad(x, pw):
    flat = tuple(v for pair in reversed(pw) for v in pair)
    return torch.nn.functional.pad(x, flat)

kernel_name = 'sequential_preLN__compressed_kv_cla__glu_gated_bilinear__prompt'

def setup_inputs():

    _w = (lambda a: (lambda t: t.to(torch.bfloat16) if t.is_floating_point() else t)(torch.as_tensor(a)))
    def _A_setup():
        B, H, Sq, Sk, D, M = 1, 32, 2048, 2048, 128, 512
        Dc = 4 * D
        return {
            "x": _w((lambda *s: torch.randn(*s, dtype=torch.bfloat16) * 0.05)(B, Sq, M)),
            "c_kv": _w((lambda *s: torch.randn(*s, dtype=torch.bfloat16) * 0.4)(B, Sk, Dc)),
            "w_q": _w((lambda *s: torch.randn(*s, dtype=torch.bfloat16) * 1.6)(M, H, D) * (M ** -0.5)),
            "w_uk": _w((lambda *s: torch.randn(*s, dtype=torch.bfloat16) * 1.6)(Dc, H, D) * (Dc ** -0.5)),
            "w_uv": _w((lambda *s: torch.randn(*s, dtype=torch.bfloat16) * 0.4)(Dc, H, D) * (Dc ** -0.5)),
            "w_o": _w((lambda *s: torch.randn(*s, dtype=torch.bfloat16) * 0.4)(H, D, M) * ((H * D) ** -0.5)),
        }
    _A_in = _A_setup()

    def _B_setup():
        B, S, D, F = 1, 2048, 512, 1792
        return {
            "x": _w((lambda *s: torch.randn(*s, dtype=torch.bfloat16) * 0.05)(B, S, D)),
            "w_gate": _w((lambda *s: torch.randn(*s, dtype=torch.bfloat16) * 0.4)(D, F) * (D ** -0.5)),
            "w_up": _w((lambda *s: torch.randn(*s, dtype=torch.bfloat16) * 0.4)(D, F) * (D ** -0.5)),
            "w_down": _w((lambda *s: torch.randn(*s, dtype=torch.bfloat16) * 0.4)(F, D) * (F ** -0.5)),
        }
    _B_in = _B_setup()

    return {
        "A_x": _A_in["x"],
        "A_c_kv": _A_in["c_kv"],
        "A_w_q": _A_in["w_q"],
        "A_w_uk": _A_in["w_uk"],
        "A_w_uv": _A_in["w_uv"],
        "A_w_o": _A_in["w_o"],
        "B_x": _B_in["x"],
        "B_w_gate": _B_in["w_gate"],
        "B_w_up": _B_in["w_up"],
        "B_w_down": _B_in["w_down"],
    }

def reference(A_x, A_c_kv, A_w_q, A_w_uk, A_w_uv, A_w_o, B_x, B_w_gate, B_w_up, B_w_down):
    def _A_ref(x, c_kv, w_q, w_uk, w_uv, w_o):
        B, Sq, M = x.shape[0], x.shape[1], x.shape[2]
        Sk = c_kv.shape[1]
        H, D = w_q.shape[1], w_q.shape[2]
        q = torch.einsum("bqm,mhd->bhqd", x, w_q)
        k = torch.einsum("bkc,chd->bhkd", c_kv, w_uk)
        v = torch.einsum("bkc,chd->bhkd", c_kv, w_uv)
        scores = torch.einsum("bhqd,bhkd->bhqk", q, k) * (D ** -0.5)
        off = Sk - Sq
        qi = torch.arange(Sq)[:, None]
        kj = torch.arange(Sk)[None, :]
        cmask = kj <= (qi + off)
        scores = torch.where(cmask[None, None], scores, -1e9)
        p = _softmax(scores, axis=-1)
        ctx = torch.einsum("bhqk,bhkd->bhqd", p, v)
        return torch.einsum("bhqd,hdm->bqm", ctx, w_o)

    def _B_ref(x, w_gate, w_up, w_down):
        g = torch.einsum("bsd,df->bsf", x, w_gate)
        u = torch.einsum("bsd,df->bsf", x, w_up)
        h = g * u
        return torch.einsum("bsf,fd->bsd", h, w_down)

    x = A_x
    h = x + _A_ref(_layernorm(x, axis=-1), A_c_kv, A_w_q, A_w_uk, A_w_uv, A_w_o)
    h2 = h + _B_ref(_layernorm(h, axis=-1), B_w_gate, B_w_up, B_w_down)
    return h2
```

```python
import re

class Asm:
    def __init__(self):
        self.lines = []
    def __call__(self, s):
        for ln in s.split("\n"):
            ln = ln.strip()
            if ln:
                self.lines.append(ln)
    def label(self, name):
        self.lines.append(name + ":")
    def extend(self, lst):
        for x in lst:
            self(x)
    def text(self):
        out = []
        for ln in self.lines:
            if ln.endswith(":") or ln.startswith("."):
                out.append(ln)
            else:
                out.append("    " + ln)
        return "\n".join(out) + "\n"

def R(kind, base, n=1):
    if n == 1:
        return f"{kind}{base}"
    return f"{kind}[{base}:{base+n-1}]"

def interleave(mfmas, fillers, start=0, per_gap=1, positions=None):
    slots = [[] for _ in mfmas]
    if positions is None:
        positions = []
        g = start
        c = 0
        for _ in fillers:
            positions.append(min(g, len(mfmas) - 1))
            c += 1
            if c == per_gap:
                c = 0
                g += 1
    for f, p in zip(fillers, positions):
        slots[p].append(f)
    out = []
    for m, s in zip(mfmas, slots):
        out.append(m)
        for f in s:
            if isinstance(f, (list, tuple)):
                out.extend(f)
            else:
                out.append(f)
    return out

_reg_re = re.compile(r"^(-|abs\()?\|?([vas])(\d+)\|?\)?$")
_rng_re = re.compile(r"^(-|abs\()?\|?([vas])\[(\d+):(\d+)\]\|?\)?$")

def parse_regs(op):
    op = op.strip()
    if op in ("vcc",):
        return [("s", 106), ("s", 107)]
    if op == "vcc_lo": return [("s", 106)]
    if op == "vcc_hi": return [("s", 107)]
    if op == "exec": return [("s", 126), ("s", 127)]
    if op == "m0": return [("s", 124)]
    if op == "scc": return []
    m = _reg_re.match(op)
    if m:
        return [(m.group(2), int(m.group(3)))]
    m = _rng_re.match(op)
    if m:
        return [(m.group(2), i) for i in range(int(m.group(3)), int(m.group(4)) + 1)]
    return []

TRANS = ("v_exp_f32", "v_log_f32", "v_rcp_f32", "v_rsq_f32", "v_sqrt_f32", "v_sin_f32", "v_cos_f32", "v_rcp_iflag_f32")

class I:
    pass

def split_ops(s):
    ops, depth, cur = [], 0, ""
    for ch in s:
        if ch in "[(": depth += 1
        if ch in "])": depth -= 1
        if ch == "," and depth == 0:
            ops.append(cur.strip()); cur = ""
        else:
            cur += ch
    if cur.strip():
        ops.append(cur.strip())
    return ops

def parse(ln):
    i = I()
    i.text = ln
    ln = ln.split(";")[0].strip()
    i.label = None
    i.rd, i.wr = set(), set()
    i.srcC, i.srcAB = set(), set()
    i.kind = "other"
    i.ws = 1
    i.target = None
    if ln.endswith(":"):
        i.label = ln[:-1]; i.kind = "label"; i.ws = 0
        return i
    if ln.startswith("."):
        i.kind = "dir"; i.ws = 0
        return i
    parts = ln.split(None, 1)
    mn = parts[0]
    i.mn = mn
    rest = parts[1] if len(parts) > 1 else ""
    ops = split_ops(rest)
    mods = ""
    if ops:
        toks = ops[-1].split()
        ops[-1] = toks[0]
        mods = " ".join(toks[1:])
    i.mods = mods
    i.ops = ops
    regs = [parse_regs(o) for o in ops]
    def allr(lst):
        s = set()
        for r in lst: s.update(r)
        return s
    if mn.startswith("v_mfma"):
        i.kind = "mfma"
        i.passes = 8 if "32x32x16" in mn else 4
        i.wr = set(regs[0]); i.srcAB = allr(regs[1:3]); i.srcC = set(regs[3])
        i.rd = i.srcAB | i.srcC
    elif mn == "s_nop":
        i.kind = "nop"; i.ws = int(ops[0], 0) + 1
    elif mn == "s_waitcnt":
        i.kind = "wait"
        i.vm = i.lgkm = None
        m = re.search(r"vmcnt\((\d+)\)", ln)
        if m: i.vm = int(m.group(1))
        m = re.search(r"lgkmcnt\((\d+)\)", ln)
        if m: i.lgkm = int(m.group(1))
    elif mn == "s_barrier":
        i.kind = "barrier"
    elif mn in ("s_branch",) or mn.startswith("s_cbranch"):
        i.kind = "branch"; i.target = ops[0]; i.uncond = (mn == "s_branch")
        if "vcc" in mn: i.rd = set(parse_regs("vcc"))
        if "exec" in mn: i.rd = set(parse_regs("exec"))
    elif mn == "s_endpgm":
        i.kind = "end"
    elif mn.startswith("s_load") or mn.startswith("s_memtime") or mn.startswith("s_memrealtime"):
        i.kind = "smem"; i.wr = set(regs[0]); i.rd = allr(regs[1:])
    elif mn.startswith("s_cmp") or mn.startswith("s_bitcmp") or mn in ("s_setprio", "s_sleep"):
        i.kind = "salu"; i.rd = allr(regs)
    elif mn.startswith("s_"):
        i.kind = "salu"; i.wr = set(regs[0]); i.rd = allr(regs[1:])
        if "saveexec" in mn:
            i.wr |= set(parse_regs("exec")); i.rd |= set(parse_regs("exec"))
        if mn in ("s_addk_i32", "s_mulk_i32"): i.rd |= set(regs[0])
    elif mn.startswith("ds_read") or mn.startswith("ds_bpermute") or mn.startswith("ds_swizzle") or mn.startswith("ds_permute"):
        i.kind = "dsr"; i.wr = set(regs[0]); i.rd = allr(regs[1:])
    elif mn.startswith("ds_write") or mn.startswith("ds_add"):
        i.kind = "dsw"; i.rd = allr(regs)
    elif mn.startswith("buffer_load") or mn.startswith("global_load"):
        if " lds" in (" " + mods) or "_lds_" in mn:
            i.kind = "dma"; i.rd = allr(regs) | {("s", 124)}
        else:
            i.kind = "vld"; i.wr = set(regs[0]); i.rd = allr(regs[1:])
    elif mn.startswith("buffer_store") or mn.startswith("global_store") or mn.startswith("buffer_atomic") or mn.startswith("global_atomic"):
        i.kind = "vst"; i.rd = allr(regs)
        di = 0 if mn.startswith("buffer") else 1
        i.data = set(regs[di])
        i.wide = mn.endswith("x4") or mn.endswith("x3")
        if "atomic" in mn and "sc0" in mods:
            i.wr = set(regs[0]); i.kind = "vld"
    elif mn in ("buffer_wbl2", "buffer_inv"):
        i.kind = "vmisc"
    elif mn.startswith("v_"):
        i.kind = "valu"
        i.trans = any(mn.startswith(t) for t in TRANS)
        i.dpp = ("quad_perm" in ln or "row_" in ln or "_dpp" in mn)
        if mn.startswith("v_cmp"):
            i.wr = set(regs[0]); i.rd = allr(regs[1:])
            if mn.startswith("v_cmpx"): i.wr |= set(parse_regs("exec"))
        elif mn.startswith("v_permlane") and "swap" in mn:
            i.wr = allr(regs[:2]); i.rd = allr(regs[:2])
        elif "_co_" in mn:
            i.wr = allr(regs[:2]); i.rd = allr(regs[2:])
        else:
            i.wr = set(regs[0]); i.rd = allr(regs[1:])
            if mn.startswith("v_fmac") or mn.startswith("v_dot2c") or mn.startswith("v_pk_fmac") or mn.startswith("v_writelane") or i.dpp:
                i.rd |= set(regs[0])
            if mn.startswith("v_cndmask") and len(ops) == 3:
                i.rd |= set(parse_regs("vcc"))
    return i

def required(p, c):
    best = (0, "")
    def up(n, why):
        nonlocal best
        if n > best[0]: best = (n, why)
    vec_w = lambda s: {r for r in s if r[0] in "va"}
    sg = lambda s: {r for r in s if r[0] == "s"}
    if p.kind == "mfma":
        big = 12 if p.passes == 8 else 8
        if c.kind == "mfma":
            if p.wr & c.srcAB: up(big, "mfma D->AB")
            if p.wr & c.srcC:
                if not (p.wr == c.srcC and p.passes == c.passes): up(10 if p.passes == 8 else 6, "mfma D->C overlap")
            elif p.wr & c.wr:
                up(10 if p.passes == 8 else 6, "mfma D->D WAW (conservative)")
        elif c.kind in ("valu", "vld", "vst", "dsr", "dsw", "dma"):
            if p.wr & (c.rd | c.wr): up(big, "mfma D->use")
        if c.kind == "valu" and (p.srcC & c.wr): up(7 if p.passes == 8 else 3, "mfma srcC WAR")
        if c.kind in ("vld", "dsr") and (p.srcC & c.wr): up(7 if p.passes == 8 else 3, "mfma srcC WAR(load)")
    if p.kind == "valu":
        if c.kind == "mfma" and vec_w(p.wr) & c.rd: up(2, "valu->mfma")
        if c.kind == "mfma" and (p.wr & set(parse_regs("exec"))): up(4, "exec->mfma")
        if p.trans and c.kind in ("valu", "vst", "dsw") and not getattr(c, "trans", False) and p.wr & c.rd: up(1, "trans->use")
        if c.kind == "valu" and sg(p.wr) & c.rd:
            up(4 if c.mn.startswith("v_readlane") or c.mn.startswith("v_writelane") else 2, "valu sgpr->valu")
        if c.kind in ("vld", "vst", "dma") and sg(p.wr) & c.rd: up(5, "valu sgpr->vmem")
        if c.kind == "valu" and (c.mn.startswith("v_readfirstlane") or c.mn.startswith("v_readlane")) and vec_w(p.wr) & c.rd: up(1, "valu->readlane")
        if c.kind == "valu" and c.mn.startswith("v_permlane") and vec_w(p.wr) & c.rd: up(2, "valu->permlane")
        if c.kind == "valu" and c.dpp and vec_w(p.wr) & c.rd: up(2, "valu->dpp")
        if c.kind == "valu" and c.dpp and (p.wr & set(parse_regs("exec"))): up(5, "exec->dpp")
        if c.kind == "branch" and sg(p.wr) & c.rd: up(5, "valu vcc->branch (conservative)")
        if c.kind == "salu" and sg(p.wr) & c.rd: up(1, "valu sgpr->salu (conservative)")
    if p.kind == "salu":
        if ("s", 124) in p.wr and c.kind == "dma": up(1, "m0->dma")
    if p.kind == "vst" and p.wide:
        if c.kind == "valu" and p.data & c.wr: up(2, "store data WAR")
        elif c.kind in ("mfma", "vld", "dsr") and p.data & c.wr: up(1, "store data WAR")
    return best

def check(text, name="", take=(), loop_iters=2, verbose=True):
    ins = [parse(l.strip()) for l in text.split("\n") if l.strip() and not l.strip().startswith(";")]
    labels = {x.label: k for k, x in enumerate(ins) if x.label}
    n = len(ins)
    preds = [[] for _ in range(n)]
    for k, x in enumerate(ins):
        if x.kind == "end": continue
        if x.kind == "branch":
            if x.target in labels: preds[labels[x.target]].append(k)
            if x.uncond: continue
        if k + 1 < n: preds[k + 1].append(k)
    errs = []
    MAXW = 13
    for k, c in enumerate(ins):
        if c.kind in ("label", "dir", "nop", "wait", "barrier", "end"): continue
        stack = [(p, 0) for p in preds[k]]
        seen = {}
        while stack:
            p, d = stack.pop()
            if p in seen and seen[p] <= d: continue
            seen[p] = d
            pi = ins[p]
            if pi.kind not in ("label", "dir"):
                need, why = required(pi, c)
                if need > d:
                    errs.append(f"HAZARD {why}: need {need} have {d}: [{p}] {pi.text}  ->  [{k}] {c.text}")
            nd = d + pi.ws
            if nd < MAXW:
                for q in preds[p]: stack.append((q, nd))
    errs += trace_check(ins, labels, take, loop_iters)
    if verbose:
        for e in errs[:40]: print(name, e)
        print(f"check {name}: {n} lines, {len(errs)} problems")
    return errs

def trace_check(ins, labels, take, loop_iters):
    errs = []
    starts = [k for k, x in enumerate(ins) if x.label and x.label.endswith("_kernel")] or [0]
    for st in starts:
        for variant in ([()] + [tuple(t) for t in take]):
            pc = st
            vm, lg = [], []
            cnt = {}
            steps = 0
            while pc < len(ins) and steps < 400000:
                steps += 1
                x = ins[pc]
                if x.kind == "end": break
                use = x.rd | x.wr
                if x.kind not in ("label", "dir", "wait"):
                    for q, nm in ((vm, "vmcnt"), (lg, "lgkmcnt")):
                        for (kd, wr, idx) in q:
                            if wr & use:
                                if x.kind in ("vld", "dsr") and kd == x.kind and not (wr & x.rd): continue
                                errs.append(f"WAIT {nm}: [{idx}] {ins[idx].text} still pending at [{pc}] {x.text}")
                if x.kind == "wait":
                    if x.vm is not None and len(vm) > x.vm: vm = vm[len(vm) - x.vm:] if x.vm else []
                    if x.lgkm is not None:
                        if any(k == "smem" for k, _, _ in lg):
                            if x.lgkm == 0: lg = []
                        elif len(lg) > x.lgkm: lg = lg[len(lg) - x.lgkm:] if x.lgkm else []
                elif x.kind in ("vld", "vst", "dma", "vmisc"):
                    vm.append((x.kind, set(x.wr), pc))
                    if len(vm) > 63: errs.append(f"vmcnt overflow (>63) at [{pc}] {x.text}")
                elif x.kind in ("dsr", "dsw", "smem"):
                    lg.append((x.kind, set(x.wr), pc))
                if x.kind == "branch":
                    t = labels.get(x.target)
                    if x.uncond: pc = t; continue
                    if t is not None and t <= pc:
                        cnt[pc] = cnt.get(pc, 0) + 1
                        if cnt[pc] < loop_iters: pc = t; continue
                        cnt[pc] = 0
                    elif x.target in variant:
                        pc = t; continue
                pc += 1
    return list(dict.fromkeys(errs))

def kernel_desc(name, vgpr, agpr=0, sgpr=96):
    acc = (vgpr + 3) // 4 * 4
    nfv = acc + agpr if agpr else vgpr
    return f""".p2align 6
.amdhsa_kernel {name}
  .amdhsa_next_free_vgpr {nfv}
  .amdhsa_next_free_sgpr {sgpr}
  .amdhsa_accum_offset {acc}
  .amdhsa_group_segment_fixed_size 0
  .amdhsa_kernarg_size 104
  .amdhsa_user_sgpr_count 2
  .amdhsa_user_sgpr_kernarg_segment_ptr 1
  .amdhsa_system_sgpr_workgroup_id_x 1
.end_amdhsa_kernel
"""

def autopad(lines):
    out, parsed = [], []
    for ln in lines:
        c = parse(ln)
        if c.kind not in ("label", "dir", "nop", "wait", "barrier", "end"):
            d, need_extra = 0, 0
            for p in reversed(parsed):
                if p.kind == "end" or (p.kind == "branch" and p.uncond): break
                if p.kind not in ("label", "dir"):
                    need, _ = required(p, c)
                    need_extra = max(need_extra, need - d)
                d += p.ws
                if d >= 13: break
            if need_extra > 0:
                nop = f"s_nop {need_extra-1}"
                out.append(nop); parsed.append(parse(nop))
        out.append(ln); parsed.append(c)
    return out

class VM:
    def __init__(self):
        self.q = []
    def issue(self, tag):
        self.q.append(tag)
    def n_after(self, tags):
        last = -1
        for k, t in enumerate(self.q):
            if t in tags: last = k
        return len(self.q) - 1 - last
```

```python
import sys, importlib
sys.path.insert(0, "gen")
from asmlib import check
NAME = "sequential_preLN__compressed_kv_cla__glu_gated_bilinear__prompt"
def build(kernels, out, do_check=True, opts=None):
    opts = opts or {}
    parts = []
    for k in kernels:
        m = importlib.import_module(k)
        parts.append(getattr(m, "gen_" + k)(**opts.get(k, {})))
    hdr = open(f"cdna_kernels/{NAME}.s.ref").read().split("\n")
    hdr = [l for l in hdr if l.startswith(";") and "@launch" not in l and "Override launch" not in l and "grid=ceil" not in l]
    txt = "\n".join(hdr) + "\n"
    txt += "; Generated by gen/build.py (hand-written generator scripts). Launch geometry:\n"
    for a, d, l in parts: txt += l + "\n"
    txt += '.amdgcn_target "amdgcn-amd-amdhsa--gfx950"\n.text\n'
    nerr = 0
    for k, (a, d, l) in zip(kernels, parts):
        t = a.text()
        if do_check:
            nerr += len(check(t, k, take=getattr(a, "take", [])))
        txt += t
    txt += '.section .rodata,"a"\n'
    for a, d, l in parts: txt += d
    open(out, "w").write(txt)
    return nerr
if __name__ == "__main__":
    ks = sys.argv[1].split(",")
    out = sys.argv[2] if len(sys.argv) > 2 else f"cdna_kernels/{NAME}.s"
    opts = eval(sys.argv[3]) if len(sys.argv) > 3 else {}
    n = build(ks, out, opts=opts)
    print("wrote", out, "problems:", n)
```

```python
import re

class Asm:
    def __init__(self):
        self.lines = []
    def __call__(self, s):
        for ln in s.split("\n"):
            ln = ln.strip()
            if ln:
                self.lines.append(ln)
    def label(self, name):
        self.lines.append(name + ":")
    def extend(self, lst):
        for x in lst:
            self(x)
    def text(self):
        out = []
        for ln in self.lines:
            if ln.endswith(":") or ln.startswith("."):
                out.append(ln)
            else:
                out.append("    " + ln)
        return "\n".join(out) + "\n"

def R(kind, base, n=1):
    if n == 1:
        return f"{kind}{base}"
    return f"{kind}[{base}:{base+n-1}]"

def interleave(mfmas, fillers, start=0, per_gap=1, positions=None):
    slots = [[] for _ in mfmas]
    if positions is None:
        positions = []
        g = start
        c = 0
        for _ in fillers:
            positions.append(min(g, len(mfmas) - 1))
            c += 1
            if c == per_gap:
                c = 0
                g += 1
    for f, p in zip(fillers, positions):
        slots[p].append(f)
    out = []
    for m, s in zip(mfmas, slots):
        out.append(m)
        for f in s:
            if isinstance(f, (list, tuple)):
                out.extend(f)
            else:
                out.append(f)
    return out

_reg_re = re.compile(r"^(-|abs\()?\|?([vas])(\d+)\|?\)?$")
_rng_re = re.compile(r"^(-|abs\()?\|?([vas])\[(\d+):(\d+)\]\|?\)?$")

def parse_regs(op):
    op = op.strip()
    if op in ("vcc",):
        return [("s", 106), ("s", 107)]
    if op == "vcc_lo": return [("s", 106)]
    if op == "vcc_hi": return [("s", 107)]
    if op == "exec": return [("s", 126), ("s", 127)]
    if op == "m0": return [("s", 124)]
    if op == "scc": return []
    m = _reg_re.match(op)
    if m:
        return [(m.group(2), int(m.group(3)))]
    m = _rng_re.match(op)
    if m:
        return [(m.group(2), i) for i in range(int(m.group(3)), int(m.group(4)) + 1)]
    return []

TRANS = ("v_exp_f32", "v_log_f32", "v_rcp_f32", "v_rsq_f32", "v_sqrt_f32", "v_sin_f32", "v_cos_f32", "v_rcp_iflag_f32")

class I:
    pass

def split_ops(s):
    ops, depth, cur = [], 0, ""
    for ch in s:
        if ch in "[(": depth += 1
        if ch in "])": depth -= 1
        if ch == "," and depth == 0:
            ops.append(cur.strip()); cur = ""
        else:
            cur += ch
    if cur.strip():
        ops.append(cur.strip())
    return ops

def parse(ln):
    i = I()
    i.text = ln
    ln = ln.split(";")[0].strip()
    i.label = None
    i.rd, i.wr = set(), set()
    i.srcC, i.srcAB = set(), set()
    i.kind = "other"
    i.ws = 1
    i.target = None
    if ln.endswith(":"):
        i.label = ln[:-1]; i.kind = "label"; i.ws = 0
        return i
    if ln.startswith("."):
        i.kind = "dir"; i.ws = 0
        return i
    parts = ln.split(None, 1)
    mn = parts[0]
    i.mn = mn
    rest = parts[1] if len(parts) > 1 else ""
    ops = split_ops(rest)
    mods = ""
    if ops:
        toks = ops[-1].split()
        ops[-1] = toks[0]
        mods = " ".join(toks[1:])
    i.mods = mods
    i.ops = ops
    regs = [parse_regs(o) for o in ops]
    def allr(lst):
        s = set()
        for r in lst: s.update(r)
        return s
    if mn.startswith("v_mfma"):
        i.kind = "mfma"
        i.passes = 8 if "32x32x16" in mn else 4
        i.wr = set(regs[0]); i.srcAB = allr(regs[1:3]); i.srcC = set(regs[3])
        i.rd = i.srcAB | i.srcC
    elif mn == "s_nop":
        i.kind = "nop"; i.ws = int(ops[0], 0) + 1
    elif mn == "s_waitcnt":
        i.kind = "wait"
        i.vm = i.lgkm = None
        m = re.search(r"vmcnt\((\d+)\)", ln)
        if m: i.vm = int(m.group(1))
        m = re.search(r"lgkmcnt\((\d+)\)", ln)
        if m: i.lgkm = int(m.group(1))
    elif mn == "s_barrier":
        i.kind = "barrier"
    elif mn in ("s_branch",) or mn.startswith("s_cbranch"):
        i.kind = "branch"; i.target = ops[0]; i.uncond = (mn == "s_branch")
        if "vcc" in mn: i.rd = set(parse_regs("vcc"))
        if "exec" in mn: i.rd = set(parse_regs("exec"))
    elif mn == "s_endpgm":
        i.kind = "end"
    elif mn.startswith("s_load") or mn.startswith("s_memtime") or mn.startswith("s_memrealtime"):
        i.kind = "smem"; i.wr = set(regs[0]); i.rd = allr(regs[1:])
    elif mn.startswith("s_cmp") or mn.startswith("s_bitcmp") or mn in ("s_setprio", "s_sleep"):
        i.kind = "salu"; i.rd = allr(regs)
    elif mn.startswith("s_"):
        i.kind = "salu"; i.wr = set(regs[0]); i.rd = allr(regs[1:])
        if "saveexec" in mn:
            i.wr |= set(parse_regs("exec")); i.rd |= set(parse_regs("exec"))
        if mn in ("s_addk_i32", "s_mulk_i32"): i.rd |= set(regs[0])
    elif mn.startswith("ds_read") or mn.startswith("ds_bpermute") or mn.startswith("ds_swizzle") or mn.startswith("ds_permute"):
        i.kind = "dsr"; i.wr = set(regs[0]); i.rd = allr(regs[1:])
    elif mn.startswith("ds_write") or mn.startswith("ds_add"):
        i.kind = "dsw"; i.rd = allr(regs)
    elif mn.startswith("buffer_load") or mn.startswith("global_load"):
        if " lds" in (" " + mods) or "_lds_" in mn:
            i.kind = "dma"; i.rd = allr(regs) | {("s", 124)}
        else:
            i.kind = "vld"; i.wr = set(regs[0]); i.rd = allr(regs[1:])
    elif mn.startswith("buffer_store") or mn.startswith("global_store") or mn.startswith("buffer_atomic") or mn.startswith("global_atomic"):
        i.kind = "vst"; i.rd = allr(regs)
        di = 0 if mn.startswith("buffer") else 1
        i.data = set(regs[di])
        i.wide = mn.endswith("x4") or mn.endswith("x3")
        if "atomic" in mn and "sc0" in mods:
            i.wr = set(regs[0]); i.kind = "vld"
    elif mn in ("buffer_wbl2", "buffer_inv"):
        i.kind = "vmisc"
    elif mn.startswith("v_"):
        i.kind = "valu"
        i.trans = any(mn.startswith(t) for t in TRANS)
        i.dpp = ("quad_perm" in ln or "row_" in ln or "_dpp" in mn)
        if mn.startswith("v_cmp"):
            i.wr = set(regs[0]); i.rd = allr(regs[1:])
            if mn.startswith("v_cmpx"): i.wr |= set(parse_regs("exec"))
        elif mn.startswith("v_permlane") and "swap" in mn:
            i.wr = allr(regs[:2]); i.rd = allr(regs[:2])
        elif "_co_" in mn:
            i.wr = allr(regs[:2]); i.rd = allr(regs[2:])
        else:
            i.wr = set(regs[0]); i.rd = allr(regs[1:])
            if mn.startswith("v_fmac") or mn.startswith("v_dot2c") or mn.startswith("v_pk_fmac") or mn.startswith("v_writelane") or i.dpp:
                i.rd |= set(regs[0])
            if mn.startswith("v_cndmask") and len(ops) == 3:
                i.rd |= set(parse_regs("vcc"))
    return i

def required(p, c):
    best = (0, "")
    def up(n, why):
        nonlocal best
        if n > best[0]: best = (n, why)
    vec_w = lambda s: {r for r in s if r[0] in "va"}
    sg = lambda s: {r for r in s if r[0] == "s"}
    if p.kind == "mfma":
        big = 12 if p.passes == 8 else 8
        if c.kind == "mfma":
            if p.wr & c.srcAB: up(big, "mfma D->AB")
            if p.wr & c.srcC:
                if not (p.wr == c.srcC and p.passes == c.passes): up(10 if p.passes == 8 else 6, "mfma D->C overlap")
            elif p.wr & c.wr:
                up(10 if p.passes == 8 else 6, "mfma D->D WAW (conservative)")
        elif c.kind in ("valu", "vld", "vst", "dsr", "dsw", "dma"):
            if p.wr & (c.rd | c.wr): up(big, "mfma D->use")
        if c.kind == "valu" and (p.srcC & c.wr): up(7 if p.passes == 8 else 3, "mfma srcC WAR")
        if c.kind in ("vld", "dsr") and (p.srcC & c.wr): up(7 if p.passes == 8 else 3, "mfma srcC WAR(load)")
    if p.kind == "valu":
        if c.kind == "mfma" and vec_w(p.wr) & c.rd: up(2, "valu->mfma")
        if c.kind == "mfma" and (p.wr & set(parse_regs("exec"))): up(4, "exec->mfma")
        if p.trans and c.kind in ("valu", "vst", "dsw") and not getattr(c, "trans", False) and p.wr & c.rd: up(1, "trans->use")
        if c.kind == "valu" and sg(p.wr) & c.rd:
            up(4 if c.mn.startswith("v_readlane") or c.mn.startswith("v_writelane") else 2, "valu sgpr->valu")
        if c.kind in ("vld", "vst", "dma") and sg(p.wr) & c.rd: up(5, "valu sgpr->vmem")
        if c.kind == "valu" and (c.mn.startswith("v_readfirstlane") or c.mn.startswith("v_readlane")) and vec_w(p.wr) & c.rd: up(1, "valu->readlane")
        if c.kind == "valu" and c.mn.startswith("v_permlane") and vec_w(p.wr) & c.rd: up(2, "valu->permlane")
        if c.kind == "valu" and c.dpp and vec_w(p.wr) & c.rd: up(2, "valu->dpp")
        if c.kind == "valu" and c.dpp and (p.wr & set(parse_regs("exec"))): up(5, "exec->dpp")
        if c.kind == "branch" and sg(p.wr) & c.rd: up(1, "valu vcc->branch (conservative)")
        if c.kind == "salu" and sg(p.wr) & c.rd: up(1, "valu sgpr->salu (conservative)")
    if p.kind == "salu":
        if ("s", 124) in p.wr and c.kind == "dma": up(1, "m0->dma")
    if p.kind == "vst" and p.wide:
        if c.kind == "valu" and p.data & c.wr: up(2, "store data WAR")
        elif c.kind in ("mfma", "vld", "dsr") and p.data & c.wr: up(1, "store data WAR")
    return best

def check(text, name="", take=(), loop_iters=2, verbose=True):
    ins = [parse(l.strip()) for l in text.split("\n") if l.strip() and not l.strip().startswith(";")]
    labels = {x.label: k for k, x in enumerate(ins) if x.label}
    n = len(ins)
    preds = [[] for _ in range(n)]
    for k, x in enumerate(ins):
        if x.kind == "end": continue
        if x.kind == "branch":
            if x.target in labels: preds[labels[x.target]].append(k)
            if x.uncond: continue
        if k + 1 < n: preds[k + 1].append(k)
    errs = []
    MAXW = 13
    for k, c in enumerate(ins):
        if c.kind in ("label", "dir", "nop", "wait", "barrier", "end"): continue
        stack = [(p, 0) for p in preds[k]]
        seen = {}
        while stack:
            p, d = stack.pop()
            if p in seen and seen[p] <= d: continue
            seen[p] = d
            pi = ins[p]
            if pi.kind not in ("label", "dir"):
                need, why = required(pi, c)
                if need > d:
                    errs.append(f"HAZARD {why}: need {need} have {d}: [{p}] {pi.text}  ->  [{k}] {c.text}")
            nd = d + pi.ws
            if nd < MAXW:
                for q in preds[p]: stack.append((q, nd))
    errs += trace_check(ins, labels, take, loop_iters)
    if verbose:
        for e in errs[:40]: print(name, e)
        print(f"check {name}: {n} lines, {len(errs)} problems")
    return errs

def trace_check(ins, labels, take, loop_iters):
    errs = []
    starts = [k for k, x in enumerate(ins) if x.label and x.label.endswith("_kernel")] or [0]
    for st in starts:
        for variant in ([()] + [tuple(t) for t in take]):
            pc = st
            vm, lg = [], []
            cnt = {}
            steps = 0
            while pc < len(ins) and steps < 400000:
                steps += 1
                x = ins[pc]
                if x.kind == "end": break
                use = x.rd | x.wr
                if x.kind not in ("label", "dir", "wait"):
                    for q, nm in ((vm, "vmcnt"), (lg, "lgkmcnt")):
                        for (kd, wr, idx) in q:
                            if wr & use:
                                if x.kind in ("vld", "dsr") and kd == x.kind and not (wr & x.rd): continue
                                errs.append(f"WAIT {nm}: [{idx}] {ins[idx].text} still pending at [{pc}] {x.text}")
                if x.kind == "wait":
                    if x.vm is not None and len(vm) > x.vm: vm = vm[len(vm) - x.vm:] if x.vm else []
                    if x.lgkm is not None:
                        if any(k == "smem" for k, _, _ in lg):
                            if x.lgkm == 0: lg = []
                        elif len(lg) > x.lgkm: lg = lg[len(lg) - x.lgkm:] if x.lgkm else []
                elif x.kind in ("vld", "vst", "dma", "vmisc"):
                    vm.append((x.kind, set(x.wr), pc))
                    if len(vm) > 63: errs.append(f"vmcnt overflow (>63) at [{pc}] {x.text}")
                elif x.kind in ("dsr", "dsw", "smem"):
                    lg.append((x.kind, set(x.wr), pc))
                if x.kind == "branch":
                    t = labels.get(x.target)
                    if x.uncond: pc = t; continue
                    if t is not None and t <= pc:
                        cnt[pc] = cnt.get(pc, 0) + 1
                        if cnt[pc] < loop_iters: pc = t; continue
                        cnt[pc] = 0
                    elif x.target in variant:
                        pc = t; continue
                pc += 1
    return list(dict.fromkeys(errs))

def kernel_desc(name, vgpr, agpr=0, sgpr=102):
    acc = (vgpr + 3) // 4 * 4
    nfv = acc + agpr if agpr else vgpr
    return f""".p2align 6
.amdhsa_kernel {name}
  .amdhsa_next_free_vgpr {nfv}
  .amdhsa_next_free_sgpr {sgpr}
  .amdhsa_accum_offset {acc}
  .amdhsa_group_segment_fixed_size 0
  .amdhsa_kernarg_size 104
  .amdhsa_user_sgpr_count 2
  .amdhsa_user_sgpr_kernarg_segment_ptr 1
  .amdhsa_system_sgpr_workgroup_id_x 1
.end_amdhsa_kernel
"""

def autopad(lines):
    out, parsed = [], []
    for ln in lines:
        c = parse(ln)
        if c.kind not in ("label", "dir", "nop", "wait", "barrier", "end"):
            d, need_extra = 0, 0
            for p in reversed(parsed):
                if p.kind == "end" or (p.kind == "branch" and p.uncond): break
                if p.kind not in ("label", "dir"):
                    need, _ = required(p, c)
                    need_extra = max(need_extra, need - d)
                d += p.ws
                if d >= 13: break
            if need_extra > 0:
                nop = f"s_nop {need_extra-1}"
                out.append(nop); parsed.append(parse(nop))
        out.append(ln); parsed.append(c)
    return out

class VM:
    def __init__(self):
        self.q = []
    def issue(self, tag):
        self.q.append(tag)
    def n_after(self, tags):
        missing = [t for t in tags if t not in self.q]
        if missing: print("VM WARNING: waiting on never-issued tags", missing)
        last = -1
        for k, t in enumerate(self.q):
            if t in tags: last = k
        return len(self.q) - 1 - last

def icost(t):
    if isinstance(t, (list, tuple)): return sum(icost(x) for x in t)
    if t.endswith(":"): return 0
    if any(t.startswith(x) for x in TRANS): return 8
    if t.startswith("buffer_"): return COST_VMEM
    if t.startswith("ds_write"): return 12
    if t.startswith("s_nop"): return 4*(int(t.split()[1]) + 1)
    if t.startswith("s_"): return COST_SALU
    return 4
COST_VMEM, COST_SALU = 8, 4

def sched(mf, streams, budget=24):
    n = len(mf)
    if n == 0:
        o = []
        for s in streams:
            for it in s["items"]: o += list(it) if isinstance(it, (list, tuple)) else [it]
        return o
    st = []
    for s in streams:
        items = s["items"]
        lo, hi = s.get("lo", 0), min(s.get("hi", n-1), n-1)
        tot = sum(icost(x) for x in items) or 1
        acc, ideal = 0, []
        for it in items:
            ideal.append(lo + (hi - lo + 1) * acc / tot)
            acc += icost(it)
        st.append(dict(items=items, ideal=ideal, pos=0, lo=lo, hi=hi))
    out = []
    for g in range(n):
        out.append(mf[g])
        used = 0
        while True:
            cand = [s for s in st if s["pos"] < len(s["items"]) and s["lo"] <= g]
            if not cand: break
            forced = [s for s in cand if s["hi"] <= g]
            if forced: s = min(forced, key=lambda s: s["ideal"][s["pos"]])
            else:
                s = min(cand, key=lambda s: s["ideal"][s["pos"]])
                c = icost(s["items"][s["pos"]])
                idl = s["ideal"][s["pos"]]
                if idl >= g + 1.5: break
                if used + c > budget and idl > g - 1.0:
                    alt = [z for z in cand if z is not s and used + icost(z["items"][z["pos"]]) <= budget and z["ideal"][z["pos"]] < g + 1.5]
                    if not alt: break
                    s = min(alt, key=lambda z: z["ideal"][z["pos"]])
            it = s["items"][s["pos"]]
            s["pos"] += 1
            used += icost(it)
            out += list(it) if isinstance(it, (list, tuple)) else [it]
    return out
```

```python
import re

class Asm:
    def __init__(self):
        self.lines = []
    def __call__(self, s):
        for ln in s.split("\n"):
            ln = ln.strip()
            if ln:
                self.lines.append(ln)
    def label(self, name):
        self.lines.append(name + ":")
    def extend(self, lst):
        for x in lst:
            self(x)
    def text(self):
        out = []
        for ln in self.lines:
            if ln.endswith(":") or ln.startswith("."):
                out.append(ln)
            else:
                out.append("    " + ln)
        return "\n".join(out) + "\n"

def R(kind, base, n=1):
    if n == 1:
        return f"{kind}{base}"
    return f"{kind}[{base}:{base+n-1}]"

def interleave(mfmas, fillers, start=0, per_gap=1, positions=None):
    slots = [[] for _ in mfmas]
    if positions is None:
        positions = []
        g = start
        c = 0
        for _ in fillers:
            positions.append(min(g, len(mfmas) - 1))
            c += 1
            if c == per_gap:
                c = 0
                g += 1
    for f, p in zip(fillers, positions):
        slots[p].append(f)
    out = []
    for m, s in zip(mfmas, slots):
        out.append(m)
        for f in s:
            if isinstance(f, (list, tuple)):
                out.extend(f)
            else:
                out.append(f)
    return out

_reg_re = re.compile(r"^(-|abs\()?\|?([vas])(\d+)\|?\)?$")
_rng_re = re.compile(r"^(-|abs\()?\|?([vas])\[(\d+):(\d+)\]\|?\)?$")

def parse_regs(op):
    op = op.strip()
    if op in ("vcc",):
        return [("s", 106), ("s", 107)]
    if op == "vcc_lo": return [("s", 106)]
    if op == "vcc_hi": return [("s", 107)]
    if op == "exec": return [("s", 126), ("s", 127)]
    if op == "m0": return [("s", 124)]
    if op == "scc": return []
    m = _reg_re.match(op)
    if m:
        return [(m.group(2), int(m.group(3)))]
    m = _rng_re.match(op)
    if m:
        return [(m.group(2), i) for i in range(int(m.group(3)), int(m.group(4)) + 1)]
    return []

TRANS = ("v_exp_f32", "v_log_f32", "v_rcp_f32", "v_rsq_f32", "v_sqrt_f32", "v_sin_f32", "v_cos_f32", "v_rcp_iflag_f32")

class I:
    pass

def split_ops(s):
    ops, depth, cur = [], 0, ""
    for ch in s:
        if ch in "[(": depth += 1
        if ch in "])": depth -= 1
        if ch == "," and depth == 0:
            ops.append(cur.strip()); cur = ""
        else:
            cur += ch
    if cur.strip():
        ops.append(cur.strip())
    return ops

def parse(ln):
    i = I()
    i.text = ln
    ln = ln.split(";")[0].strip()
    i.label = None
    i.rd, i.wr = set(), set()
    i.srcC, i.srcAB = set(), set()
    i.kind = "other"
    i.ws = 1
    i.target = None
    if ln.endswith(":"):
        i.label = ln[:-1]; i.kind = "label"; i.ws = 0
        return i
    if ln.startswith("."):
        i.kind = "dir"; i.ws = 0
        return i
    parts = ln.split(None, 1)
    mn = parts[0]
    i.mn = mn
    rest = parts[1] if len(parts) > 1 else ""
    ops = split_ops(rest)
    mods = ""
    if ops:
        toks = ops[-1].split()
        ops[-1] = toks[0]
        mods = " ".join(toks[1:])
    i.mods = mods
    i.ops = ops
    regs = [parse_regs(o) for o in ops]
    def allr(lst):
        s = set()
        for r in lst: s.update(r)
        return s
    if mn.startswith("v_mfma"):
        i.kind = "mfma"
        i.passes = 8 if "32x32x16" in mn else 4
        i.wr = set(regs[0]); i.srcAB = allr(regs[1:3]); i.srcC = set(regs[3])
        i.rd = i.srcAB | i.srcC
    elif mn == "s_nop":
        i.kind = "nop"; i.ws = int(ops[0], 0) + 1
    elif mn == "s_waitcnt":
        i.kind = "wait"
        i.vm = i.lgkm = None
        m = re.search(r"vmcnt\((\d+)\)", ln)
        if m: i.vm = int(m.group(1))
        m = re.search(r"lgkmcnt\((\d+)\)", ln)
        if m: i.lgkm = int(m.group(1))
    elif mn == "s_barrier":
        i.kind = "barrier"
    elif mn in ("s_branch",) or mn.startswith("s_cbranch"):
        i.kind = "branch"; i.target = ops[0]; i.uncond = (mn == "s_branch")
        if "vcc" in mn: i.rd = set(parse_regs("vcc"))
        if "exec" in mn: i.rd = set(parse_regs("exec"))
    elif mn == "s_endpgm":
        i.kind = "end"
    elif mn.startswith("s_load") or mn.startswith("s_memtime") or mn.startswith("s_memrealtime"):
        i.kind = "smem"; i.wr = set(regs[0]); i.rd = allr(regs[1:])
    elif mn.startswith("s_cmp") or mn.startswith("s_bitcmp") or mn in ("s_setprio", "s_sleep"):
        i.kind = "salu"; i.rd = allr(regs)
    elif mn.startswith("s_"):
        i.kind = "salu"; i.wr = set(regs[0]); i.rd = allr(regs[1:])
        if "saveexec" in mn:
            i.wr |= set(parse_regs("exec")); i.rd |= set(parse_regs("exec"))
        if mn in ("s_addk_i32", "s_mulk_i32"): i.rd |= set(regs[0])
    elif mn.startswith("ds_read") or mn.startswith("ds_bpermute") or mn.startswith("ds_swizzle") or mn.startswith("ds_permute"):
        i.kind = "dsr"; i.wr = set(regs[0]); i.rd = allr(regs[1:])
    elif mn.startswith("ds_write") or mn.startswith("ds_add"):
        i.kind = "dsw"; i.rd = allr(regs)
    elif mn.startswith("buffer_load") or mn.startswith("global_load"):
        if " lds" in (" " + mods) or "_lds_" in mn:
            i.kind = "dma"; i.rd = allr(regs) | {("s", 124)}
        else:
            i.kind = "vld"; i.wr = set(regs[0]); i.rd = allr(regs[1:])
    elif mn.startswith("buffer_store") or mn.startswith("global_store") or mn.startswith("buffer_atomic") or mn.startswith("global_atomic"):
        i.kind = "vst"; i.rd = allr(regs)
        di = 0 if mn.startswith("buffer") else 1
        i.data = set(regs[di])
        i.wide = mn.endswith("x4") or mn.endswith("x3")
        if "atomic" in mn and "sc0" in mods:
            i.wr = set(regs[0]); i.kind = "vld"
    elif mn in ("buffer_wbl2", "buffer_inv"):
        i.kind = "vmisc"
    elif mn.startswith("v_"):
        i.kind = "valu"
        i.trans = any(mn.startswith(t) for t in TRANS)
        i.dpp = ("quad_perm" in ln or "row_" in ln or "_dpp" in mn)
        if mn.startswith("v_cmp"):
            i.wr = set(regs[0]); i.rd = allr(regs[1:])
            if mn.startswith("v_cmpx"): i.wr |= set(parse_regs("exec"))
        elif mn.startswith("v_permlane") and "swap" in mn:
            i.wr = allr(regs[:2]); i.rd = allr(regs[:2])
        elif "_co_" in mn:
            i.wr = allr(regs[:2]); i.rd = allr(regs[2:])
        else:
            i.wr = set(regs[0]); i.rd = allr(regs[1:])
            if mn.startswith("v_fmac") or mn.startswith("v_dot2c") or mn.startswith("v_pk_fmac") or mn.startswith("v_writelane") or i.dpp:
                i.rd |= set(regs[0])
            if mn.startswith("v_cndmask") and len(ops) == 3:
                i.rd |= set(parse_regs("vcc"))
    return i

def required(p, c):
    best = (0, "")
    def up(n, why):
        nonlocal best
        if n > best[0]: best = (n, why)
    vec_w = lambda s: {r for r in s if r[0] in "va"}
    sg = lambda s: {r for r in s if r[0] == "s"}
    if p.kind == "mfma":
        big = 12 if p.passes == 8 else 8
        if c.kind == "mfma":
            if p.wr & c.srcAB: up(big, "mfma D->AB")
            if p.wr & c.srcC:
                if not (p.wr == c.srcC and p.passes == c.passes): up(10 if p.passes == 8 else 6, "mfma D->C overlap")
            elif p.wr & c.wr:
                up(10 if p.passes == 8 else 6, "mfma D->D WAW (conservative)")
        elif c.kind in ("valu", "vld", "vst", "dsr", "dsw", "dma"):
            if p.wr & (c.rd | c.wr): up(big, "mfma D->use")
        if c.kind == "valu" and (p.srcC & c.wr): up(7 if p.passes == 8 else 3, "mfma srcC WAR")
        if c.kind in ("vld", "dsr") and (p.srcC & c.wr): up(7 if p.passes == 8 else 3, "mfma srcC WAR(load)")
    if p.kind == "valu":
        if c.kind == "mfma" and vec_w(p.wr) & c.rd: up(2, "valu->mfma")
        if c.kind == "mfma" and (p.wr & set(parse_regs("exec"))): up(4, "exec->mfma")
        if p.trans and c.kind in ("valu", "vst", "dsw") and not getattr(c, "trans", False) and p.wr & c.rd: up(1, "trans->use")
        if c.kind == "valu" and sg(p.wr) & c.rd:
            up(4 if c.mn.startswith("v_readlane") or c.mn.startswith("v_writelane") else 2, "valu sgpr->valu")
        if c.kind in ("vld", "vst", "dma") and sg(p.wr) & c.rd: up(5, "valu sgpr->vmem")
        if c.kind == "valu" and (c.mn.startswith("v_readfirstlane") or c.mn.startswith("v_readlane")) and vec_w(p.wr) & c.rd: up(1, "valu->readlane")
        if c.kind == "valu" and c.mn.startswith("v_permlane") and vec_w(p.wr) & c.rd: up(2, "valu->permlane")
        if c.kind == "valu" and c.dpp and vec_w(p.wr) & c.rd: up(2, "valu->dpp")
        if c.kind == "valu" and c.dpp and (p.wr & set(parse_regs("exec"))): up(5, "exec->dpp")
        if c.kind == "branch" and sg(p.wr) & c.rd: up(1, "valu vcc->branch (conservative)")
        if c.kind == "salu" and sg(p.wr) & c.rd: up(1, "valu sgpr->salu (conservative)")
    if p.kind == "salu":
        if ("s", 124) in p.wr and c.kind == "dma": up(1, "m0->dma")
    if p.kind == "vst" and p.wide:
        if c.kind == "valu" and p.data & c.wr: up(2, "store data WAR")
        elif c.kind in ("mfma", "vld", "dsr") and p.data & c.wr: up(1, "store data WAR")
    return best

def check(text, name="", take=(), loop_iters=2, verbose=True):
    ins = [parse(l.strip()) for l in text.split("\n") if l.strip() and not l.strip().startswith(";")]
    labels = {x.label: k for k, x in enumerate(ins) if x.label}
    n = len(ins)
    preds = [[] for _ in range(n)]
    for k, x in enumerate(ins):
        if x.kind == "end": continue
        if x.kind == "branch":
            if x.target in labels: preds[labels[x.target]].append(k)
            if x.uncond: continue
        if k + 1 < n: preds[k + 1].append(k)
    errs = []
    MAXW = 13
    for k, c in enumerate(ins):
        if c.kind in ("label", "dir", "nop", "wait", "barrier", "end"): continue
        stack = [(p, 0) for p in preds[k]]
        seen = {}
        while stack:
            p, d = stack.pop()
            if p in seen and seen[p] <= d: continue
            seen[p] = d
            pi = ins[p]
            if pi.kind not in ("label", "dir"):
                need, why = required(pi, c)
                if need > d:
                    errs.append(f"HAZARD {why}: need {need} have {d}: [{p}] {pi.text}  ->  [{k}] {c.text}")
            nd = d + pi.ws
            if nd < MAXW:
                for q in preds[p]: stack.append((q, nd))
    errs += trace_check(ins, labels, take, loop_iters)
    if verbose:
        for e in errs[:40]: print(name, e)
        print(f"check {name}: {n} lines, {len(errs)} problems")
    return errs

def trace_check(ins, labels, take, loop_iters):
    errs = []
    starts = [k for k, x in enumerate(ins) if x.label and x.label.endswith("_kernel")] or [0]
    for st in starts:
        for variant in ([()] + [tuple(t) for t in take]):
            pc = st
            vm, lg = [], []
            cnt = {}
            steps = 0
            while pc < len(ins) and steps < 30000:
                steps += 1
                x = ins[pc]
                if x.kind == "end": break
                use = x.rd | x.wr
                if x.kind not in ("label", "dir", "wait"):
                    for q, nm in ((vm, "vmcnt"), (lg, "lgkmcnt")):
                        for (kd, wr, idx) in q:
                            if wr & use:
                                if x.kind in ("vld", "dsr") and kd == x.kind and not (wr & x.rd): continue
                                errs.append(f"WAIT {nm}: [{idx}] {ins[idx].text} still pending at [{pc}] {x.text}")
                if x.kind == "wait":
                    if x.vm is not None and len(vm) > x.vm: vm = vm[len(vm) - x.vm:] if x.vm else []
                    if x.lgkm is not None:
                        if any(k == "smem" for k, _, _ in lg):
                            if x.lgkm == 0: lg = []
                        elif len(lg) > x.lgkm: lg = lg[len(lg) - x.lgkm:] if x.lgkm else []
                elif x.kind in ("vld", "vst", "dma", "vmisc"):
                    vm.append((x.kind, set(x.wr), pc))
                    if len(vm) > 63: errs.append(f"vmcnt overflow (>63) at [{pc}] {x.text}")
                elif x.kind in ("dsr", "dsw", "smem"):
                    lg.append((x.kind, set(x.wr), pc))
                if x.kind == "branch":
                    t = labels.get(x.target)
                    if x.uncond: pc = t; continue
                    if t is not None and t <= pc:
                        cnt[pc] = cnt.get(pc, 0) + 1
                        if cnt[pc] < loop_iters: pc = t; continue
                        cnt[pc] = 0
                    elif x.target in variant:
                        pc = t; continue
                pc += 1
    return list(dict.fromkeys(errs))

def kernel_desc(name, vgpr, agpr=0, sgpr=102):
    acc = (vgpr + 3) // 4 * 4
    nfv = acc + agpr if agpr else vgpr
    return f""".p2align 6
.amdhsa_kernel {name}
  .amdhsa_next_free_vgpr {nfv}
  .amdhsa_next_free_sgpr {sgpr}
  .amdhsa_accum_offset {acc}
  .amdhsa_group_segment_fixed_size 0
  .amdhsa_kernarg_size 104
  .amdhsa_user_sgpr_count 2
  .amdhsa_user_sgpr_kernarg_segment_ptr 1
  .amdhsa_system_sgpr_workgroup_id_x 1
.end_amdhsa_kernel
"""

def autopad(lines):
    out, parsed = [], []
    for ln in lines:
        c = parse(ln)
        if c.kind not in ("label", "dir", "nop", "wait", "barrier", "end"):
            d, need_extra = 0, 0
            for p in reversed(parsed):
                if p.kind == "end" or (p.kind == "branch" and p.uncond): break
                if p.kind not in ("label", "dir"):
                    need, _ = required(p, c)
                    need_extra = max(need_extra, need - d)
                d += p.ws
                if d >= 13: break
            if need_extra > 0:
                nop = f"s_nop {need_extra-1}"
                out.append(nop); parsed.append(parse(nop))
        out.append(ln); parsed.append(c)
    return out

class VM:
    def __init__(self):
        self.q = []
    def issue(self, tag):
        self.q.append(tag)
    def n_after(self, tags):
        missing = [t for t in tags if t not in self.q]
        if missing: print("VM WARNING: waiting on never-issued tags", missing)
        last = -1
        for k, t in enumerate(self.q):
            if t in tags: last = k
        return len(self.q) - 1 - last

def icost(t):
    if isinstance(t, (list, tuple)): return sum(icost(x) for x in t)
    if t.endswith(":"): return 0
    if any(t.startswith(x) for x in TRANS): return 8
    if t.startswith("buffer_"): return COST_VMEM
    if t.startswith("ds_write"): return 12
    if t.startswith("s_nop"): return 4*(int(t.split()[1]) + 1)
    if t.startswith("s_"): return COST_SALU
    return 4
COST_VMEM, COST_SALU = 8, 4

def sched(mf, streams, budget=24):
    n = len(mf)
    if n == 0:
        o = []
        for s in streams:
            for it in s["items"]: o += list(it) if isinstance(it, (list, tuple)) else [it]
        return o
    st = []
    for s in streams:
        items = s["items"]
        lo, hi = s.get("lo", 0), min(s.get("hi", n-1), n-1)
        tot = sum(icost(x) for x in items) or 1
        acc, ideal = 0, []
        for it in items:
            ideal.append(lo + (hi - lo + 1) * acc / tot)
            acc += icost(it)
        st.append(dict(items=items, ideal=ideal, pos=0, lo=lo, hi=hi))
    out = []
    for g in range(n):
        out.append(mf[g])
        used = 0
        while True:
            cand = [s for s in st if s["pos"] < len(s["items"]) and s["lo"] <= g]
            if not cand: break
            forced = [s for s in cand if s["hi"] <= g]
            if forced: s = min(forced, key=lambda s: s["ideal"][s["pos"]])
            else:
                s = min(cand, key=lambda s: s["ideal"][s["pos"]])
                c = icost(s["items"][s["pos"]])
                idl = s["ideal"][s["pos"]]
                if idl >= g + 1.5: break
                if used + c > budget and idl > g - 1.0:
                    alt = [z for z in cand if z is not s and used + icost(z["items"][z["pos"]]) <= budget and z["ideal"][z["pos"]] < g + 1.5]
                    if not alt: break
                    s = min(alt, key=lambda z: z["ideal"][z["pos"]])
            it = s["items"][s["pos"]]
            s["pos"] += 1
            used += icost(it)
            out += list(it) if isinstance(it, (list, tuple)) else [it]
    return out

FAKE16 = [False, 8]
_sched32 = sched
def fake16(mf):
    out, cnt = [], {}
    for m in mf:
        ops = split_ops(m.split(None, 1)[1])
        k, b = ops[0][0], int(ops[0][2:].split(":")[0])
        j = cnt.get(ops[0], 0); cnt[ops[0]] = j + 1
        for q in range(2):
            sub = (2*j + q) % 4
            d = R(k, b + 4*sub, 4)
            c = d
            if ops[3] != ops[0]:
                cnt["c" + ops[0]] = ops[3]
            if j < 2 and ("c" + ops[0]) in cnt:
                cc = cnt["c" + ops[0]]
                c = cc if cc == "0" else R(cc[0], int(cc[2:].split(":")[0]) + 4*sub, 4)
            bb = ops[2] if q == 0 else R(ops[2][0], int(ops[2][2:].split(":")[0]) ^ 4, 4)
            out.append(f"v_mfma_f32_16x16x32_bf16 {d}, {ops[1]}, {bb}, {c}")
    return out
def sched(mf, streams, budget=24):
    if not FAKE16[0] or not mf: return _sched32(mf, streams, budget)
    n = len(mf)
    st = [dict(items=s["items"], lo=2*s.get("lo", 0), hi=2*min(s.get("hi", n-1), n-1) + 1) for s in streams]
    return _sched32(fake16(mf), st, FAKE16[1])
```

```python
import re

class Asm:
    def __init__(self):
        self.lines = []
    def __call__(self, s):
        for ln in s.split("\n"):
            ln = ln.strip()
            if ln:
                self.lines.append(ln)
    def label(self, name):
        self.lines.append(name + ":")
    def extend(self, lst):
        for x in lst:
            self(x)
    def text(self):
        out = []
        for ln in self.lines:
            if ln.endswith(":") or ln.startswith("."):
                out.append(ln)
            else:
                out.append("    " + ln)
        return "\n".join(out) + "\n"

def R(kind, base, n=1):
    if n == 1:
        return f"{kind}{base}"
    return f"{kind}[{base}:{base+n-1}]"

def interleave(mfmas, fillers, start=0, per_gap=1, positions=None):
    slots = [[] for _ in mfmas]
    if positions is None:
        positions = []
        g = start
        c = 0
        for _ in fillers:
            positions.append(min(g, len(mfmas) - 1))
            c += 1
            if c == per_gap:
                c = 0
                g += 1
    for f, p in zip(fillers, positions):
        slots[p].append(f)
    out = []
    for m, s in zip(mfmas, slots):
        out.append(m)
        for f in s:
            if isinstance(f, (list, tuple)):
                out.extend(f)
            else:
                out.append(f)
    return out

_reg_re = re.compile(r"^(-|abs\()?\|?([vas])(\d+)\|?\)?$")
_rng_re = re.compile(r"^(-|abs\()?\|?([vas])\[(\d+):(\d+)\]\|?\)?$")

def parse_regs(op):
    op = op.strip()
    if op in ("vcc",):
        return [("s", 106), ("s", 107)]
    if op == "vcc_lo": return [("s", 106)]
    if op == "vcc_hi": return [("s", 107)]
    if op == "exec": return [("s", 126), ("s", 127)]
    if op == "m0": return [("s", 124)]
    if op == "scc": return []
    m = _reg_re.match(op)
    if m:
        return [(m.group(2), int(m.group(3)))]
    m = _rng_re.match(op)
    if m:
        return [(m.group(2), i) for i in range(int(m.group(3)), int(m.group(4)) + 1)]
    return []

TRANS = ("v_exp_f32", "v_log_f32", "v_rcp_f32", "v_rsq_f32", "v_sqrt_f32", "v_sin_f32", "v_cos_f32", "v_rcp_iflag_f32")

class I:
    pass

def split_ops(s):
    ops, depth, cur = [], 0, ""
    for ch in s:
        if ch in "[(": depth += 1
        if ch in "])": depth -= 1
        if ch == "," and depth == 0:
            ops.append(cur.strip()); cur = ""
        else:
            cur += ch
    if cur.strip():
        ops.append(cur.strip())
    return ops

def parse(ln):
    i = I()
    i.text = ln
    ln = ln.split(";")[0].strip()
    i.label = None
    i.rd, i.wr = set(), set()
    i.srcC, i.srcAB = set(), set()
    i.kind = "other"
    i.ws = 1
    i.target = None
    if ln.endswith(":"):
        i.label = ln[:-1]; i.kind = "label"; i.ws = 0
        return i
    if ln.startswith("."):
        i.kind = "dir"; i.ws = 0
        return i
    parts = ln.split(None, 1)
    mn = parts[0]
    i.mn = mn
    rest = parts[1] if len(parts) > 1 else ""
    ops = split_ops(rest)
    mods = ""
    if ops:
        toks = ops[-1].split()
        ops[-1] = toks[0]
        mods = " ".join(toks[1:])
    i.mods = mods
    i.ops = ops
    regs = [parse_regs(o) for o in ops]
    def allr(lst):
        s = set()
        for r in lst: s.update(r)
        return s
    if mn.startswith("v_mfma"):
        i.kind = "mfma"
        i.passes = 8 if "32x32x16" in mn else 4
        i.wr = set(regs[0]); i.srcAB = allr(regs[1:3]); i.srcC = set(regs[3])
        i.rd = i.srcAB | i.srcC
    elif mn == "s_nop":
        i.kind = "nop"; i.ws = int(ops[0], 0) + 1
    elif mn == "s_waitcnt":
        i.kind = "wait"
        i.vm = i.lgkm = None
        m = re.search(r"vmcnt\((\d+)\)", ln)
        if m: i.vm = int(m.group(1))
        m = re.search(r"lgkmcnt\((\d+)\)", ln)
        if m: i.lgkm = int(m.group(1))
    elif mn == "s_barrier":
        i.kind = "barrier"
    elif mn in ("s_branch",) or mn.startswith("s_cbranch"):
        i.kind = "branch"; i.target = ops[0]; i.uncond = (mn == "s_branch")
        if "vcc" in mn: i.rd = set(parse_regs("vcc"))
        if "exec" in mn: i.rd = set(parse_regs("exec"))
    elif mn == "s_endpgm":
        i.kind = "end"
    elif mn.startswith("s_load") or mn.startswith("s_memtime") or mn.startswith("s_memrealtime"):
        i.kind = "smem"; i.wr = set(regs[0]); i.rd = allr(regs[1:])
    elif mn.startswith("s_cmp") or mn.startswith("s_bitcmp") or mn in ("s_setprio", "s_sleep"):
        i.kind = "salu"; i.rd = allr(regs)
    elif mn.startswith("s_"):
        i.kind = "salu"; i.wr = set(regs[0]); i.rd = allr(regs[1:])
        if "saveexec" in mn:
            i.wr |= set(parse_regs("exec")); i.rd |= set(parse_regs("exec"))
        if mn in ("s_addk_i32", "s_mulk_i32"): i.rd |= set(regs[0])
    elif mn.startswith("ds_read") or mn.startswith("ds_bpermute") or mn.startswith("ds_swizzle") or mn.startswith("ds_permute"):
        i.kind = "dsr"; i.wr = set(regs[0]); i.rd = allr(regs[1:])
    elif mn.startswith("ds_write") or mn.startswith("ds_add"):
        i.kind = "dsw"; i.rd = allr(regs)
    elif mn.startswith("buffer_load") or mn.startswith("global_load"):
        if " lds" in (" " + mods) or "_lds_" in mn:
            i.kind = "dma"; i.rd = allr(regs) | {("s", 124)}
        else:
            i.kind = "vld"; i.wr = set(regs[0]); i.rd = allr(regs[1:])
    elif mn.startswith("buffer_store") or mn.startswith("global_store") or mn.startswith("buffer_atomic") or mn.startswith("global_atomic"):
        i.kind = "vst"; i.rd = allr(regs)
        di = 0 if mn.startswith("buffer") else 1
        i.data = set(regs[di])
        i.wide = mn.endswith("x4") or mn.endswith("x3")
        if "atomic" in mn and "sc0" in mods:
            i.wr = set(regs[0]); i.kind = "vld"
    elif mn in ("buffer_wbl2", "buffer_inv"):
        i.kind = "vmisc"
    elif mn.startswith("v_"):
        i.kind = "valu"
        i.trans = any(mn.startswith(t) for t in TRANS)
        i.dpp = ("quad_perm" in ln or "row_" in ln or "_dpp" in mn)
        if mn.startswith("v_cmp"):
            i.wr = set(regs[0]); i.rd = allr(regs[1:])
            if mn.startswith("v_cmpx"): i.wr |= set(parse_regs("exec"))
        elif mn.startswith("v_permlane") and "swap" in mn:
            i.wr = allr(regs[:2]); i.rd = allr(regs[:2])
        elif "_co_" in mn:
            i.wr = allr(regs[:2]); i.rd = allr(regs[2:])
        else:
            i.wr = set(regs[0]); i.rd = allr(regs[1:])
            if mn.startswith("v_fmac") or mn.startswith("v_dot2c") or mn.startswith("v_pk_fmac") or mn.startswith("v_writelane") or i.dpp:
                i.rd |= set(regs[0])
            if mn.startswith("v_cndmask") and len(ops) == 3:
                i.rd |= set(parse_regs("vcc"))
    return i

def required(p, c):
    best = (0, "")
    def up(n, why):
        nonlocal best
        if n > best[0]: best = (n, why)
    vec_w = lambda s: {r for r in s if r[0] in "va"}
    sg = lambda s: {r for r in s if r[0] == "s"}
    if p.kind == "mfma":
        big = 12 if p.passes == 8 else 8
        if c.kind == "mfma":
            if p.wr & c.srcAB: up(big, "mfma D->AB")
            if p.wr & c.srcC:
                if not (p.wr == c.srcC and p.passes == c.passes): up(10 if p.passes == 8 else 6, "mfma D->C overlap")
            elif p.wr & c.wr:
                up(10 if p.passes == 8 else 6, "mfma D->D WAW (conservative)")
        elif c.kind in ("valu", "vld", "vst", "dsr", "dsw", "dma"):
            if p.wr & (c.rd | c.wr): up(big, "mfma D->use")
        if c.kind == "valu" and (p.srcC & c.wr): up(7 if p.passes == 8 else 3, "mfma srcC WAR")
        if c.kind in ("vld", "dsr") and (p.srcC & c.wr): up(7 if p.passes == 8 else 3, "mfma srcC WAR(load)")
    if p.kind == "valu":
        if c.kind == "mfma" and vec_w(p.wr) & c.rd: up(2, "valu->mfma")
        if c.kind == "mfma" and (p.wr & set(parse_regs("exec"))): up(4, "exec->mfma")
        if p.trans and c.kind in ("valu", "vst", "dsw") and not getattr(c, "trans", False) and p.wr & c.rd: up(1, "trans->use")
        if c.kind == "valu" and sg(p.wr) & c.rd:
            up(4 if c.mn.startswith("v_readlane") or c.mn.startswith("v_writelane") else 2, "valu sgpr->valu")
        if c.kind in ("vld", "vst", "dma") and sg(p.wr) & c.rd: up(5, "valu sgpr->vmem")
        if c.kind == "valu" and (c.mn.startswith("v_readfirstlane") or c.mn.startswith("v_readlane")) and vec_w(p.wr) & c.rd: up(1, "valu->readlane")
        if c.kind == "valu" and c.mn.startswith("v_permlane") and vec_w(p.wr) & c.rd: up(2, "valu->permlane")
        if c.kind == "valu" and c.dpp and vec_w(p.wr) & c.rd: up(2, "valu->dpp")
        if c.kind == "valu" and c.dpp and (p.wr & set(parse_regs("exec"))): up(5, "exec->dpp")
        if c.kind == "branch" and sg(p.wr) & c.rd: up(1, "valu vcc->branch (conservative)")
        if c.kind == "salu" and sg(p.wr) & c.rd: up(1, "valu sgpr->salu (conservative)")
    if p.kind == "salu":
        if ("s", 124) in p.wr and c.kind == "dma": up(1, "m0->dma")
    if p.kind == "vst" and p.wide:
        if c.kind == "valu" and p.data & c.wr: up(2, "store data WAR")
        elif c.kind in ("mfma", "vld", "dsr") and p.data & c.wr: up(1, "store data WAR")
    return best

def check(text, name="", take=(), loop_iters=2, verbose=True):
    ins = [parse(l.strip()) for l in text.split("\n") if l.strip() and not l.strip().startswith(";")]
    labels = {x.label: k for k, x in enumerate(ins) if x.label}
    n = len(ins)
    preds = [[] for _ in range(n)]
    for k, x in enumerate(ins):
        if x.kind == "end": continue
        if x.kind == "branch":
            if x.target in labels: preds[labels[x.target]].append(k)
            if x.uncond: continue
        if k + 1 < n: preds[k + 1].append(k)
    errs = []
    MAXW = 13
    for k, c in enumerate(ins):
        if c.kind in ("label", "dir", "nop", "wait", "barrier", "end"): continue
        stack = [(p, 0) for p in preds[k]]
        seen = {}
        while stack:
            p, d = stack.pop()
            if p in seen and seen[p] <= d: continue
            seen[p] = d
            pi = ins[p]
            if pi.kind not in ("label", "dir"):
                need, why = required(pi, c)
                if need > d:
                    errs.append(f"HAZARD {why}: need {need} have {d}: [{p}] {pi.text}  ->  [{k}] {c.text}")
            nd = d + pi.ws
            if nd < MAXW:
                for q in preds[p]: stack.append((q, nd))
    errs += trace_check(ins, labels, take, loop_iters)
    if verbose:
        for e in errs[:40]: print(name, e)
        print(f"check {name}: {n} lines, {len(errs)} problems")
    return errs

def trace_check(ins, labels, take, loop_iters):
    errs = []
    starts = [k for k, x in enumerate(ins) if x.label and x.label.endswith("_kernel")] or [0]
    for st in starts:
        for variant in ([()] + [tuple(t) for t in take]):
            pc = st
            vm, lg = [], []
            cnt = {}
            steps = 0
            while pc < len(ins) and steps < 30000:
                steps += 1
                x = ins[pc]
                if x.kind == "end": break
                use = x.rd | x.wr
                if x.kind not in ("label", "dir", "wait"):
                    for q, nm in ((vm, "vmcnt"), (lg, "lgkmcnt")):
                        for (kd, wr, idx) in q:
                            if wr & use:
                                if x.kind in ("vld", "dsr") and kd == x.kind and not (wr & x.rd): continue
                                errs.append(f"WAIT {nm}: [{idx}] {ins[idx].text} still pending at [{pc}] {x.text}")
                if x.kind == "wait":
                    if x.vm is not None and len(vm) > x.vm: vm = vm[len(vm) - x.vm:] if x.vm else []
                    if x.lgkm is not None:
                        if any(k == "smem" for k, _, _ in lg):
                            if x.lgkm == 0: lg = []
                        elif len(lg) > x.lgkm: lg = lg[len(lg) - x.lgkm:] if x.lgkm else []
                elif x.kind in ("vld", "vst", "dma", "vmisc"):
                    vm.append((x.kind, set(x.wr), pc))
                    if len(vm) > 63: errs.append(f"vmcnt overflow (>63) at [{pc}] {x.text}")
                elif x.kind in ("dsr", "dsw", "smem"):
                    lg.append((x.kind, set(x.wr), pc))
                if x.kind == "branch":
                    t = labels.get(x.target)
                    if x.uncond: pc = t; continue
                    if t is not None and t <= pc:
                        cnt[pc] = cnt.get(pc, 0) + 1
                        if cnt[pc] < loop_iters: pc = t; continue
                        cnt[pc] = 0
                    elif x.target in variant:
                        pc = t; continue
                pc += 1
    return list(dict.fromkeys(errs))

def kernel_desc(name, vgpr, agpr=0, sgpr=102):
    acc = (vgpr + 3) // 4 * 4
    nfv = acc + agpr if agpr else vgpr
    return f""".p2align 6
.amdhsa_kernel {name}
  .amdhsa_next_free_vgpr {nfv}
  .amdhsa_next_free_sgpr {sgpr}
  .amdhsa_accum_offset {acc}
  .amdhsa_group_segment_fixed_size 0
  .amdhsa_kernarg_size 104
  .amdhsa_user_sgpr_count 2
  .amdhsa_user_sgpr_kernarg_segment_ptr 1
  .amdhsa_system_sgpr_workgroup_id_x 1
.end_amdhsa_kernel
"""

def autopad(lines):
    out, parsed = [], []
    for ln in lines:
        c = parse(ln)
        if c.kind not in ("label", "dir", "nop", "wait", "barrier", "end"):
            d, need_extra = 0, 0
            for p in reversed(parsed):
                if p.kind == "end" or (p.kind == "branch" and p.uncond): break
                if p.kind not in ("label", "dir"):
                    need, _ = required(p, c)
                    need_extra = max(need_extra, need - d)
                d += p.ws
                if d >= 13: break
            if need_extra > 0:
                nop = f"s_nop {need_extra-1}"
                out.append(nop); parsed.append(parse(nop))
        out.append(ln); parsed.append(c)
    return out

class VM:
    def __init__(self):
        self.q = []
    def issue(self, tag):
        self.q.append(tag)
    def n_after(self, tags):
        missing = [t for t in tags if t not in self.q]
        if missing: print("VM WARNING: waiting on never-issued tags", missing)
        last = -1
        for k, t in enumerate(self.q):
            if t in tags: last = k
        return len(self.q) - 1 - last

def icost(t):
    if isinstance(t, (list, tuple)): return sum(icost(x) for x in t)
    if t.endswith(":"): return 0
    if any(t.startswith(x) for x in TRANS): return 8
    if t.startswith("buffer_"): return COST_VMEM
    if t.startswith("ds_write"): return 12
    if t.startswith("s_nop"): return 4*(int(t.split()[1]) + 1)
    if t.startswith("s_"): return COST_SALU
    return 4
COST_VMEM, COST_SALU = 8, 4

def sched(mf, streams, budget=24):
    n = len(mf)
    if n == 0:
        o = []
        for s in streams:
            for it in s["items"]: o += list(it) if isinstance(it, (list, tuple)) else [it]
        return o
    st = []
    for s in streams:
        items = s["items"]
        lo, hi = s.get("lo", 0), min(s.get("hi", n-1), n-1)
        tot = sum(icost(x) for x in items) or 1
        acc, ideal = 0, []
        for it in items:
            ideal.append(lo + (hi - lo + 1) * acc / tot)
            acc += icost(it)
        st.append(dict(items=items, ideal=ideal, pos=0, lo=lo, hi=hi))
    out = []
    for g in range(n):
        out.append(mf[g])
        used = 0
        while True:
            cand = [s for s in st if s["pos"] < len(s["items"]) and s["lo"] <= g]
            if not cand: break
            forced = [s for s in cand if s["hi"] <= g]
            if forced: s = min(forced, key=lambda s: s["ideal"][s["pos"]])
            else:
                s = min(cand, key=lambda s: s["ideal"][s["pos"]])
                c = icost(s["items"][s["pos"]])
                idl = s["ideal"][s["pos"]]
                if idl >= g + 1.5: break
                if used + c > budget and idl > g - 1.0:
                    alt = [z for z in cand if z is not s and used + icost(z["items"][z["pos"]]) <= budget and z["ideal"][z["pos"]] < g + 1.5]
                    if not alt: break
                    s = min(alt, key=lambda z: z["ideal"][z["pos"]])
            it = s["items"][s["pos"]]
            s["pos"] += 1
            used += icost(it)
            out += list(it) if isinstance(it, (list, tuple)) else [it]
    return out

FAKE16 = [False, 8]
_sched32 = sched
def fake16(mf):
    out, cnt = [], {}
    for m in mf:
        ops = split_ops(m.split(None, 1)[1])
        k, b = ops[0][0], int(ops[0][2:].split(":")[0])
        j = cnt.get(ops[0], 0); cnt[ops[0]] = j + 1
        for q in range(2):
            sub = (2*j + q) % 4
            d = R(k, b + 4*sub, 4)
            c = d
            if ops[3] != ops[0]:
                cnt["c" + ops[0]] = ops[3]
            if j < 2 and ("c" + ops[0]) in cnt:
                cc = cnt["c" + ops[0]]
                c = cc if cc == "0" else R(cc[0], int(cc[2:].split(":")[0]) + 4*sub, 4)
            bb = ops[2] if q == 0 else R(ops[2][0], int(ops[2][2:].split(":")[0]) ^ 4, 4)
            out.append(f"v_mfma_f32_16x16x32_bf16 {d}, {ops[1]}, {bb}, {c}")
    return out
def sched(mf, streams, budget=24):
    if not FAKE16[0] or not mf: return _sched32(mf, streams, budget)
    n = len(mf)
    st = [dict(items=s["items"], lo=2*s.get("lo", 0), hi=2*min(s.get("hi", n-1), n-1) + 1) for s in streams]
    return _sched32(fake16(mf), st, FAKE16[1])

def _cls(t):
    x = t[0] if isinstance(t, (list, tuple)) else t
    return 1 if x.startswith("v_") else 0
def c16(t, first):
    if isinstance(t, (list, tuple)):
        return sum(c16(x, first and k == 0) for k, x in enumerate(t))
    if t.endswith(":"): return 0
    if any(t.startswith(x) for x in TRANS): return 8
    if t.startswith("s_nop"): return 4*(int(t.split()[1]) + 1)
    if t.startswith("s_"): return 0 if first else 2
    if t.startswith("buffer_") or t.startswith("global_"): return 6
    if t.startswith("ds_write"): return 12
    return 4
def sched16(mf, streams, budget=8):
    n = len(mf)
    if n == 0:
        o = []
        for s in streams:
            for it in s["items"]: o += list(it) if isinstance(it, (list, tuple)) else [it]
        return o
    st = []
    for s in streams:
        items = s["items"]
        lo, hi = s.get("lo", 0), min(s.get("hi", n-1), n-1)
        tot = sum(max(1, c16(x, False)) for x in items) or 1
        acc, ideal = 0, []
        for it in items:
            ideal.append(lo + (hi - lo + 1) * acc / tot)
            acc += max(1, c16(it, False))
        st.append(dict(items=items, ideal=ideal, pos=0, lo=lo, hi=hi, q=[]))
    out = []
    for g in range(n):
        out.append(mf[g])
        used, nonv = 0, 0
        while True:
            cand = [s for s in st if s["pos"] < len(s["items"]) and s["lo"] <= g]
            if not cand: break
            cost = lambda z: c16(z["items"][z["pos"]], nonv == 0 and not z["q"])
            forced = [s for s in cand if s["hi"] <= g]
            if forced: s = min(forced, key=lambda s: s["ideal"][s["pos"]])
            else:
                s = min(cand, key=lambda s: s["ideal"][s["pos"]])
                idl = s["ideal"][s["pos"]]
                if idl >= g + 2.5: break
                if used + cost(s) > budget and (idl > g - 2.0 and used > 0):
                    alt = [z for z in cand if z is not s and used + cost(z) <= budget and z["ideal"][z["pos"]] < g + 2.5]
                    if not alt: break
                    s = min(alt, key=lambda z: z["ideal"][z["pos"]])
            it = s["items"][s["pos"]]
            used += cost(s)
            if _cls(it) == 0: nonv += 1
            s["pos"] += 1
            s["q"].append(it)
        while any(s["q"] for s in st):
            heads = [s for s in st if s["q"]]
            s = min(heads, key=lambda z: _cls(z["q"][0]))
            it = s["q"].pop(0)
            out += list(it) if isinstance(it, (list, tuple)) else [it]
    return out
```

```python
import re

class Asm:
    def __init__(self):
        self.lines = []
    def __call__(self, s):
        for ln in s.split("\n"):
            ln = ln.strip()
            if ln:
                self.lines.append(ln)
    def label(self, name):
        self.lines.append(name + ":")
    def extend(self, lst):
        for x in lst:
            self(x)
    def text(self):
        out = []
        for ln in self.lines:
            if ln.endswith(":") or ln.startswith("."):
                out.append(ln)
            else:
                out.append("    " + ln)
        return "\n".join(out) + "\n"

def R(kind, base, n=1):
    if n == 1:
        return f"{kind}{base}"
    return f"{kind}[{base}:{base+n-1}]"

def interleave(mfmas, fillers, start=0, per_gap=1, positions=None):
    slots = [[] for _ in mfmas]
    if positions is None:
        positions = []
        g = start
        c = 0
        for _ in fillers:
            positions.append(min(g, len(mfmas) - 1))
            c += 1
            if c == per_gap:
                c = 0
                g += 1
    for f, p in zip(fillers, positions):
        slots[p].append(f)
    out = []
    for m, s in zip(mfmas, slots):
        out.append(m)
        for f in s:
            if isinstance(f, (list, tuple)):
                out.extend(f)
            else:
                out.append(f)
    return out

_reg_re = re.compile(r"^(-|abs\()?\|?([vas])(\d+)\|?\)?$")
_rng_re = re.compile(r"^(-|abs\()?\|?([vas])\[(\d+):(\d+)\]\|?\)?$")

def parse_regs(op):
    op = op.strip()
    if op in ("vcc",):
        return [("s", 106), ("s", 107)]
    if op == "vcc_lo": return [("s", 106)]
    if op == "vcc_hi": return [("s", 107)]
    if op == "exec": return [("s", 126), ("s", 127)]
    if op == "m0": return [("s", 124)]
    if op == "scc": return []
    m = _reg_re.match(op)
    if m:
        return [(m.group(2), int(m.group(3)))]
    m = _rng_re.match(op)
    if m:
        return [(m.group(2), i) for i in range(int(m.group(3)), int(m.group(4)) + 1)]
    return []

TRANS = ("v_exp_f32", "v_log_f32", "v_rcp_f32", "v_rsq_f32", "v_sqrt_f32", "v_sin_f32", "v_cos_f32", "v_rcp_iflag_f32")

class I:
    pass

def split_ops(s):
    ops, depth, cur = [], 0, ""
    for ch in s:
        if ch in "[(": depth += 1
        if ch in "])": depth -= 1
        if ch == "," and depth == 0:
            ops.append(cur.strip()); cur = ""
        else:
            cur += ch
    if cur.strip():
        ops.append(cur.strip())
    return ops

def parse(ln):
    i = I()
    i.text = ln
    ln = ln.split(";")[0].strip()
    i.label = None
    i.rd, i.wr = set(), set()
    i.srcC, i.srcAB = set(), set()
    i.kind = "other"
    i.ws = 1
    i.target = None
    if ln.endswith(":"):
        i.label = ln[:-1]; i.kind = "label"; i.ws = 0
        return i
    if ln.startswith("."):
        i.kind = "dir"; i.ws = 0
        return i
    parts = ln.split(None, 1)
    mn = parts[0]
    i.mn = mn
    rest = parts[1] if len(parts) > 1 else ""
    ops = split_ops(rest)
    mods = ""
    if ops:
        toks = ops[-1].split()
        ops[-1] = toks[0]
        mods = " ".join(toks[1:])
    i.mods = mods
    i.ops = ops
    regs = [parse_regs(o) for o in ops]
    def allr(lst):
        s = set()
        for r in lst: s.update(r)
        return s
    if mn.startswith("v_mfma"):
        i.kind = "mfma"
        i.passes = 8 if "32x32x16" in mn else 4
        i.wr = set(regs[0]); i.srcAB = allr(regs[1:3]); i.srcC = set(regs[3])
        i.rd = i.srcAB | i.srcC
    elif mn == "s_nop":
        i.kind = "nop"; i.ws = int(ops[0], 0) + 1
    elif mn == "s_waitcnt":
        i.kind = "wait"
        i.vm = i.lgkm = None
        m = re.search(r"vmcnt\((\d+)\)", ln)
        if m: i.vm = int(m.group(1))
        m = re.search(r"lgkmcnt\((\d+)\)", ln)
        if m: i.lgkm = int(m.group(1))
    elif mn == "s_barrier":
        i.kind = "barrier"
    elif mn in ("s_branch",) or mn.startswith("s_cbranch"):
        i.kind = "branch"; i.target = ops[0]; i.uncond = (mn == "s_branch")
        if "vcc" in mn: i.rd = set(parse_regs("vcc"))
        if "exec" in mn: i.rd = set(parse_regs("exec"))
    elif mn == "s_endpgm":
        i.kind = "end"
    elif mn.startswith("s_load") or mn.startswith("s_memtime") or mn.startswith("s_memrealtime"):
        i.kind = "smem"; i.wr = set(regs[0]); i.rd = allr(regs[1:])
    elif mn.startswith("s_cmp") or mn.startswith("s_bitcmp") or mn in ("s_setprio", "s_sleep"):
        i.kind = "salu"; i.rd = allr(regs)
    elif mn.startswith("s_"):
        i.kind = "salu"; i.wr = set(regs[0]); i.rd = allr(regs[1:])
        if "saveexec" in mn:
            i.wr |= set(parse_regs("exec")); i.rd |= set(parse_regs("exec"))
        if mn in ("s_addk_i32", "s_mulk_i32"): i.rd |= set(regs[0])
    elif mn.startswith("ds_read") or mn.startswith("ds_bpermute") or mn.startswith("ds_swizzle") or mn.startswith("ds_permute"):
        i.kind = "dsr"; i.wr = set(regs[0]); i.rd = allr(regs[1:])
    elif mn.startswith("ds_write") or mn.startswith("ds_add"):
        i.kind = "dsw"; i.rd = allr(regs)
    elif mn.startswith("buffer_load") or mn.startswith("global_load"):
        if " lds" in (" " + mods) or "_lds_" in mn:
            i.kind = "dma"; i.rd = allr(regs) | {("s", 124)}
        else:
            i.kind = "vld"; i.wr = set(regs[0]); i.rd = allr(regs[1:])
    elif mn.startswith("buffer_store") or mn.startswith("global_store") or mn.startswith("buffer_atomic") or mn.startswith("global_atomic"):
        i.kind = "vst"; i.rd = allr(regs)
        di = 0 if mn.startswith("buffer") else 1
        i.data = set(regs[di])
        i.wide = mn.endswith("x4") or mn.endswith("x3")
        if "atomic" in mn and "sc0" in mods:
            i.wr = set(regs[0]); i.kind = "vld"
    elif mn in ("buffer_wbl2", "buffer_inv"):
        i.kind = "vmisc"
    elif mn.startswith("v_"):
        i.kind = "valu"
        i.trans = any(mn.startswith(t) for t in TRANS)
        i.dpp = ("quad_perm" in ln or "row_" in ln or "_dpp" in mn)
        if mn.startswith("v_cmp"):
            i.wr = set(regs[0]); i.rd = allr(regs[1:])
            if mn.startswith("v_cmpx"): i.wr |= set(parse_regs("exec"))
        elif mn.startswith("v_permlane") and "swap" in mn:
            i.wr = allr(regs[:2]); i.rd = allr(regs[:2])
        elif "_co_" in mn:
            i.wr = allr(regs[:2]); i.rd = allr(regs[2:])
        else:
            i.wr = set(regs[0]); i.rd = allr(regs[1:])
            if mn.startswith("v_fmac") or mn.startswith("v_dot2c") or mn.startswith("v_pk_fmac") or mn.startswith("v_writelane") or i.dpp:
                i.rd |= set(regs[0])
            if mn.startswith("v_cndmask") and len(ops) == 3:
                i.rd |= set(parse_regs("vcc"))
    return i

def required(p, c):
    best = (0, "")
    def up(n, why):
        nonlocal best
        if n > best[0]: best = (n, why)
    vec_w = lambda s: {r for r in s if r[0] in "va"}
    sg = lambda s: {r for r in s if r[0] == "s"}
    if p.kind == "mfma":
        big = 12 if p.passes == 8 else 8
        if c.kind == "mfma":
            if p.wr & c.srcAB: up(big, "mfma D->AB")
            if p.wr & c.srcC:
                if not (p.wr == c.srcC and p.passes == c.passes): up(10 if p.passes == 8 else 6, "mfma D->C overlap")
            elif p.wr & c.wr:
                up(10 if p.passes == 8 else 6, "mfma D->D WAW (conservative)")
        elif c.kind in ("valu", "vld", "vst", "dsr", "dsw", "dma"):
            if p.wr & (c.rd | c.wr): up(big, "mfma D->use")
        if c.kind == "valu" and (p.srcC & c.wr): up(7 if p.passes == 8 else 3, "mfma srcC WAR")
        if c.kind in ("vld", "dsr") and (p.srcC & c.wr): up(7 if p.passes == 8 else 3, "mfma srcC WAR(load)")
    if p.kind == "valu":
        if c.kind == "mfma" and vec_w(p.wr) & c.rd: up(2, "valu->mfma")
        if c.kind == "mfma" and (p.wr & set(parse_regs("exec"))): up(4, "exec->mfma")
        if p.trans and c.kind in ("valu", "vst", "dsw") and not getattr(c, "trans", False) and p.wr & c.rd: up(1, "trans->use")
        if c.kind == "valu" and sg(p.wr) & c.rd:
            up(4 if c.mn.startswith("v_readlane") or c.mn.startswith("v_writelane") else 2, "valu sgpr->valu")
        if c.kind in ("vld", "vst", "dma") and sg(p.wr) & c.rd: up(5, "valu sgpr->vmem")
        if c.kind == "valu" and (c.mn.startswith("v_readfirstlane") or c.mn.startswith("v_readlane")) and vec_w(p.wr) & c.rd: up(1, "valu->readlane")
        if c.kind == "valu" and c.mn.startswith("v_permlane") and vec_w(p.wr) & c.rd: up(2, "valu->permlane")
        if c.kind == "valu" and c.dpp and vec_w(p.wr) & c.rd: up(2, "valu->dpp")
        if c.kind == "valu" and c.dpp and (p.wr & set(parse_regs("exec"))): up(5, "exec->dpp")
        if c.kind == "branch" and sg(p.wr) & c.rd: up(1, "valu vcc->branch (conservative)")
        if c.kind == "salu" and sg(p.wr) & c.rd: up(1, "valu sgpr->salu (conservative)")
    if p.kind == "salu":
        if ("s", 124) in p.wr and c.kind == "dma": up(1, "m0->dma")
    if p.kind == "vst" and p.wide:
        if c.kind == "valu" and p.data & c.wr: up(2, "store data WAR")
        elif c.kind in ("mfma", "vld", "dsr") and p.data & c.wr: up(1, "store data WAR")
    return best

def check(text, name="", take=(), loop_iters=2, verbose=True):
    ins = [parse(l.strip()) for l in text.split("\n") if l.strip() and not l.strip().startswith(";")]
    labels = {x.label: k for k, x in enumerate(ins) if x.label}
    n = len(ins)
    preds = [[] for _ in range(n)]
    for k, x in enumerate(ins):
        if x.kind == "end": continue
        if x.kind == "branch":
            if x.target in labels: preds[labels[x.target]].append(k)
            if x.uncond: continue
        if k + 1 < n: preds[k + 1].append(k)
    errs = []
    MAXW = 13
    for k, c in enumerate(ins):
        if c.kind in ("label", "dir", "nop", "wait", "barrier", "end"): continue
        stack = [(p, 0) for p in preds[k]]
        seen = {}
        while stack:
            p, d = stack.pop()
            if p in seen and seen[p] <= d: continue
            seen[p] = d
            pi = ins[p]
            if pi.kind not in ("label", "dir"):
                need, why = required(pi, c)
                if need > d:
                    errs.append(f"HAZARD {why}: need {need} have {d}: [{p}] {pi.text}  ->  [{k}] {c.text}")
            nd = d + pi.ws
            if nd < MAXW:
                for q in preds[p]: stack.append((q, nd))
    errs += trace_check(ins, labels, take, loop_iters)
    if verbose:
        for e in errs[:40]: print(name, e)
        print(f"check {name}: {n} lines, {len(errs)} problems")
    return errs

def trace_check(ins, labels, take, loop_iters):
    errs = []
    starts = [k for k, x in enumerate(ins) if x.label and x.label.endswith("_kernel")] or [0]
    for st in starts:
        for variant in ([()] + [tuple(t) for t in take]):
            pc = st
            vm, lg = [], []
            cnt = {}
            steps = 0
            while pc < len(ins) and steps < 30000:
                steps += 1
                x = ins[pc]
                if x.kind == "end": break
                use = x.rd | x.wr
                if x.kind not in ("label", "dir", "wait"):
                    for q, nm in ((vm, "vmcnt"), (lg, "lgkmcnt")):
                        for (kd, wr, idx) in q:
                            if wr & use:
                                if x.kind in ("vld", "dsr") and kd == x.kind and not (wr & x.rd): continue
                                errs.append(f"WAIT {nm}: [{idx}] {ins[idx].text} still pending at [{pc}] {x.text}")
                if x.kind == "wait":
                    if x.vm is not None and len(vm) > x.vm: vm = vm[len(vm) - x.vm:] if x.vm else []
                    if x.lgkm is not None:
                        if any(k == "smem" for k, _, _ in lg):
                            if x.lgkm == 0: lg = []
                        elif len(lg) > x.lgkm: lg = lg[len(lg) - x.lgkm:] if x.lgkm else []
                elif x.kind in ("vld", "vst", "dma", "vmisc"):
                    vm.append((x.kind, set(x.wr), pc))
                    if len(vm) > 63: errs.append(f"vmcnt overflow (>63) at [{pc}] {x.text}")
                elif x.kind in ("dsr", "dsw", "smem"):
                    lg.append((x.kind, set(x.wr), pc))
                if x.kind == "branch":
                    t = labels.get(x.target)
                    if x.uncond: pc = t; continue
                    if t is not None and t <= pc:
                        cnt[pc] = cnt.get(pc, 0) + 1
                        if cnt[pc] < loop_iters: pc = t; continue
                        cnt[pc] = 0
                    elif x.target in variant:
                        pc = t; continue
                pc += 1
    return list(dict.fromkeys(errs))

def kernel_desc(name, vgpr, agpr=0, sgpr=102):
    acc = (vgpr + 3) // 4 * 4
    nfv = acc + agpr if agpr else vgpr
    return f""".p2align 6
.amdhsa_kernel {name}
  .amdhsa_next_free_vgpr {nfv}
  .amdhsa_next_free_sgpr {sgpr}
  .amdhsa_accum_offset {acc}
  .amdhsa_group_segment_fixed_size 0
  .amdhsa_kernarg_size 104
  .amdhsa_user_sgpr_count 2
  .amdhsa_user_sgpr_kernarg_segment_ptr 1
  .amdhsa_system_sgpr_workgroup_id_x 1
.end_amdhsa_kernel
"""

def autopad(lines):
    out, parsed = [], []
    for ln in lines:
        c = parse(ln)
        if c.kind not in ("label", "dir", "nop", "wait", "barrier", "end"):
            d, need_extra = 0, 0
            for p in reversed(parsed):
                if p.kind == "end" or (p.kind == "branch" and p.uncond): break
                if p.kind not in ("label", "dir"):
                    need, _ = required(p, c)
                    need_extra = max(need_extra, need - d)
                d += p.ws
                if d >= 13: break
            if need_extra > 0:
                nop = f"s_nop {need_extra-1}"
                out.append(nop); parsed.append(parse(nop))
        out.append(ln); parsed.append(c)
    return out

class VM:
    def __init__(self):
        self.q = []
    def issue(self, tag):
        self.q.append(tag)
    def n_after(self, tags):
        ex = lambda t: t if not (isinstance(t, tuple) and len(t) == 2 and t[1] == "lns") else None
        has = lambda q, tags: (q in tags) if ex(q) is not None else (q[0] in tags or "lns" in tags)
        missing = [t for t in tags if not any(has(q, {t}) for q in self.q)]
        if missing: print("VM WARNING: waiting on never-issued tags", missing)
        last = -1
        for k, t in enumerate(self.q):
            if has(t, tags): last = k
        return len(self.q) - 1 - last

def icost(t):
    if isinstance(t, (list, tuple)): return sum(icost(x) for x in t)
    if t.endswith(":"): return 0
    if any(t.startswith(x) for x in TRANS): return 8
    if t.startswith("buffer_"): return COST_VMEM
    if t.startswith("ds_write"): return 12
    if t.startswith("s_nop"): return 4*(int(t.split()[1]) + 1)
    if t.startswith("s_"): return COST_SALU
    return 4
COST_VMEM, COST_SALU = 8, 4

def sched(mf, streams, budget=24):
    n = len(mf)
    if n == 0:
        o = []
        for s in streams:
            for it in s["items"]: o += list(it) if isinstance(it, (list, tuple)) else [it]
        return o
    st = []
    for s in streams:
        items = s["items"]
        lo, hi = s.get("lo", 0), min(s.get("hi", n-1), n-1)
        tot = sum(icost(x) for x in items) or 1
        acc, ideal = 0, []
        for it in items:
            ideal.append(lo + (hi - lo + 1) * acc / tot)
            acc += icost(it)
        st.append(dict(items=items, ideal=ideal, pos=0, lo=lo, hi=hi))
    out = []
    for g in range(n):
        out.append(mf[g])
        used = 0
        while True:
            cand = [s for s in st if s["pos"] < len(s["items"]) and s["lo"] <= g]
            if not cand: break
            forced = [s for s in cand if s["hi"] <= g]
            if forced: s = min(forced, key=lambda s: s["ideal"][s["pos"]])
            else:
                s = min(cand, key=lambda s: s["ideal"][s["pos"]])
                c = icost(s["items"][s["pos"]])
                idl = s["ideal"][s["pos"]]
                if idl >= g + 1.5: break
                if used + c > budget and idl > g - 1.0:
                    alt = [z for z in cand if z is not s and used + icost(z["items"][z["pos"]]) <= budget and z["ideal"][z["pos"]] < g + 1.5]
                    if not alt: break
                    s = min(alt, key=lambda z: z["ideal"][z["pos"]])
            it = s["items"][s["pos"]]
            s["pos"] += 1
            used += icost(it)
            out += list(it) if isinstance(it, (list, tuple)) else [it]
    return out

FAKE16 = [False, 8]
_sched32 = sched
def fake16(mf):
    out, cnt = [], {}
    for m in mf:
        ops = split_ops(m.split(None, 1)[1])
        k, b = ops[0][0], int(ops[0][2:].split(":")[0])
        j = cnt.get(ops[0], 0); cnt[ops[0]] = j + 1
        for q in range(2):
            sub = (2*j + q) % 4
            d = R(k, b + 4*sub, 4)
            c = d
            if ops[3] != ops[0]:
                cnt["c" + ops[0]] = ops[3]
            if j < 2 and ("c" + ops[0]) in cnt:
                cc = cnt["c" + ops[0]]
                c = cc if cc == "0" else R(cc[0], int(cc[2:].split(":")[0]) + 4*sub, 4)
            bb = ops[2] if q == 0 else R(ops[2][0], int(ops[2][2:].split(":")[0]) ^ 4, 4)
            out.append(f"v_mfma_f32_16x16x32_bf16 {d}, {ops[1]}, {bb}, {c}")
    return out
def sched(mf, streams, budget=24):
    if not FAKE16[0] or not mf: return _sched32(mf, streams, budget)
    n = len(mf)
    st = [dict(items=s["items"], lo=2*s.get("lo", 0), hi=2*min(s.get("hi", n-1), n-1) + 1) for s in streams]
    return _sched32(fake16(mf), st, FAKE16[1])

def _cls(t):
    x = t[0] if isinstance(t, (list, tuple)) else t
    return 1 if x.startswith("v_") else 0
def c16(t, first):
    if isinstance(t, (list, tuple)):
        return sum(c16(x, first and k == 0) for k, x in enumerate(t))
    if t.endswith(":"): return 0
    if any(t.startswith(x) for x in TRANS): return 8
    if t.startswith("s_nop"): return 4*(int(t.split()[1]) + 1)
    if t.startswith("s_"): return 0 if first else 2
    if t.startswith("buffer_") or t.startswith("global_"): return 6
    if t.startswith("ds_write"): return 12
    return 4
def sched16(mf, streams, budget=8):
    n = len(mf)
    if n == 0:
        o = []
        for s in streams:
            for it in s["items"]: o += list(it) if isinstance(it, (list, tuple)) else [it]
        return o
    st = []
    for s in streams:
        items = s["items"]
        lo, hi = s.get("lo", 0), min(s.get("hi", n-1), n-1)
        tot = sum(max(1, c16(x, False)) for x in items) or 1
        acc, ideal = 0, []
        for it in items:
            ideal.append(lo + (hi - lo + 1) * acc / tot)
            acc += max(1, c16(it, False))
        st.append(dict(items=items, ideal=ideal, pos=0, lo=lo, hi=hi, q=[]))
    out = []
    for g in range(n):
        out.append(mf[g])
        used, nonv = 0, 0
        while True:
            cand = [s for s in st if s["pos"] < len(s["items"]) and s["lo"] <= g]
            if not cand: break
            cost = lambda z: c16(z["items"][z["pos"]], nonv == 0 and not z["q"])
            forced = [s for s in cand if s["hi"] <= g]
            if forced: s = min(forced, key=lambda s: s["ideal"][s["pos"]])
            else:
                s = min(cand, key=lambda s: s["ideal"][s["pos"]])
                idl = s["ideal"][s["pos"]]
                if idl >= g + 2.5: break
                if used + cost(s) > budget and (idl > g - 2.0 and used > 0):
                    alt = [z for z in cand if z is not s and used + cost(z) <= budget and z["ideal"][z["pos"]] < g + 2.5]
                    if not alt: break
                    s = min(alt, key=lambda z: z["ideal"][z["pos"]])
            it = s["items"][s["pos"]]
            used += cost(s)
            if _cls(it) == 0: nonv += 1
            s["pos"] += 1
            s["q"].append(it)
        while any(s["q"] for s in st):
            heads = [s for s in st if s["q"]]
            s = min(heads, key=lambda z: _cls(z["q"][0]))
            it = s["q"].pop(0)
            out += list(it) if isinstance(it, (list, tuple)) else [it]
    return out
```

```python
import re

class Asm:
    def __init__(self):
        self.lines = []
    def __call__(self, s):
        for ln in s.split("\n"):
            ln = ln.strip()
            if ln:
                self.lines.append(ln)
    def label(self, name):
        self.lines.append(name + ":")
    def extend(self, lst):
        for x in lst:
            self(x)
    def text(self):
        out = []
        for ln in self.lines:
            if ln.endswith(":") or ln.startswith("."):
                out.append(ln)
            else:
                out.append("    " + ln)
        return "\n".join(out) + "\n"

def R(kind, base, n=1):
    if n == 1:
        return f"{kind}{base}"
    return f"{kind}[{base}:{base+n-1}]"

def interleave(mfmas, fillers, start=0, per_gap=1, positions=None):
    slots = [[] for _ in mfmas]
    if positions is None:
        positions = []
        g = start
        c = 0
        for _ in fillers:
            positions.append(min(g, len(mfmas) - 1))
            c += 1
            if c == per_gap:
                c = 0
                g += 1
    for f, p in zip(fillers, positions):
        slots[p].append(f)
    out = []
    for m, s in zip(mfmas, slots):
        out.append(m)
        for f in s:
            if isinstance(f, (list, tuple)):
                out.extend(f)
            else:
                out.append(f)
    return out

_reg_re = re.compile(r"^(-|abs\()?\|?([vas])(\d+)\|?\)?$")
_rng_re = re.compile(r"^(-|abs\()?\|?([vas])\[(\d+):(\d+)\]\|?\)?$")

def parse_regs(op):
    op = op.strip()
    if op in ("vcc",):
        return [("s", 106), ("s", 107)]
    if op == "vcc_lo": return [("s", 106)]
    if op == "vcc_hi": return [("s", 107)]
    if op == "exec": return [("s", 126), ("s", 127)]
    if op == "m0": return [("s", 124)]
    if op == "scc": return []
    m = _reg_re.match(op)
    if m:
        return [(m.group(2), int(m.group(3)))]
    m = _rng_re.match(op)
    if m:
        return [(m.group(2), i) for i in range(int(m.group(3)), int(m.group(4)) + 1)]
    return []

TRANS = ("v_exp_f32", "v_log_f32", "v_rcp_f32", "v_rsq_f32", "v_sqrt_f32", "v_sin_f32", "v_cos_f32", "v_rcp_iflag_f32")

class I:
    pass

def split_ops(s):
    ops, depth, cur = [], 0, ""
    for ch in s:
        if ch in "[(": depth += 1
        if ch in "])": depth -= 1
        if ch == "," and depth == 0:
            ops.append(cur.strip()); cur = ""
        else:
            cur += ch
    if cur.strip():
        ops.append(cur.strip())
    return ops

def parse(ln):
    i = I()
    i.text = ln
    ln = ln.split(";")[0].strip()
    i.label = None
    i.rd, i.wr = set(), set()
    i.srcC, i.srcAB = set(), set()
    i.kind = "other"
    i.ws = 1
    i.target = None
    if ln.endswith(":"):
        i.label = ln[:-1]; i.kind = "label"; i.ws = 0
        return i
    if ln.startswith("."):
        i.kind = "dir"; i.ws = 0
        return i
    parts = ln.split(None, 1)
    mn = parts[0].replace("_e64", "")
    i.mn = mn
    rest = parts[1] if len(parts) > 1 else ""
    ops = split_ops(rest)
    mods = ""
    if ops:
        toks = ops[-1].split()
        ops[-1] = toks[0]
        mods = " ".join(toks[1:])
    i.mods = mods
    i.ops = ops
    regs = [parse_regs(o) for o in ops]
    def allr(lst):
        s = set()
        for r in lst: s.update(r)
        return s
    if mn.startswith("v_mfma"):
        i.kind = "mfma"
        i.passes = 8 if "32x32x16" in mn else 4
        i.wr = set(regs[0]); i.srcAB = allr(regs[1:3]); i.srcC = set(regs[3])
        i.rd = i.srcAB | i.srcC
    elif mn == "s_nop":
        i.kind = "nop"; i.ws = int(ops[0], 0) + 1
    elif mn == "s_waitcnt":
        i.kind = "wait"
        i.vm = i.lgkm = None
        m = re.search(r"vmcnt\((\d+)\)", ln)
        if m: i.vm = int(m.group(1))
        m = re.search(r"lgkmcnt\((\d+)\)", ln)
        if m: i.lgkm = int(m.group(1))
    elif mn == "s_barrier":
        i.kind = "barrier"
    elif mn in ("s_branch",) or mn.startswith("s_cbranch"):
        i.kind = "branch"; i.target = ops[0]; i.uncond = (mn == "s_branch")
        if "vcc" in mn: i.rd = set(parse_regs("vcc"))
        if "exec" in mn: i.rd = set(parse_regs("exec"))
    elif mn == "s_endpgm":
        i.kind = "end"
    elif mn.startswith("s_load") or mn.startswith("s_memtime") or mn.startswith("s_memrealtime"):
        i.kind = "smem"; i.wr = set(regs[0]); i.rd = allr(regs[1:])
    elif mn.startswith("s_cmp") or mn.startswith("s_bitcmp") or mn in ("s_setprio", "s_sleep"):
        i.kind = "salu"; i.rd = allr(regs)
    elif mn.startswith("s_"):
        i.kind = "salu"; i.wr = set(regs[0]); i.rd = allr(regs[1:])
        if "saveexec" in mn:
            i.wr |= set(parse_regs("exec")); i.rd |= set(parse_regs("exec"))
        if mn in ("s_addk_i32", "s_mulk_i32"): i.rd |= set(regs[0])
    elif mn.startswith("ds_read") or mn.startswith("ds_bpermute") or mn.startswith("ds_swizzle") or mn.startswith("ds_permute"):
        i.kind = "dsr"; i.wr = set(regs[0]); i.rd = allr(regs[1:])
    elif mn.startswith("ds_write") or mn.startswith("ds_add"):
        i.kind = "dsw"; i.rd = allr(regs)
    elif mn.startswith("buffer_load") or mn.startswith("global_load"):
        if " lds" in (" " + mods) or "_lds_" in mn:
            i.kind = "dma"; i.rd = allr(regs) | {("s", 124)}
        else:
            i.kind = "vld"; i.wr = set(regs[0]); i.rd = allr(regs[1:])
    elif mn.startswith("buffer_store") or mn.startswith("global_store") or mn.startswith("buffer_atomic") or mn.startswith("global_atomic"):
        i.kind = "vst"; i.rd = allr(regs)
        di = 0 if mn.startswith("buffer") else 1
        i.data = set(regs[di])
        i.wide = mn.endswith("x4") or mn.endswith("x3")
        if "atomic" in mn and "sc0" in mods:
            i.wr = set(regs[0]); i.kind = "vld"
    elif mn in ("buffer_wbl2", "buffer_inv"):
        i.kind = "vmisc"
    elif mn.startswith("v_"):
        i.kind = "valu"
        i.trans = any(mn.startswith(t) for t in TRANS)
        i.dpp = ("quad_perm" in ln or "row_" in ln or "_dpp" in mn)
        if mn.startswith("v_cmp"):
            i.wr = set(regs[0]); i.rd = allr(regs[1:])
            if mn.startswith("v_cmpx"): i.wr |= set(parse_regs("exec"))
        elif mn.startswith("v_permlane") and "swap" in mn:
            i.wr = allr(regs[:2]); i.rd = allr(regs[:2])
        elif "_co_" in mn:
            i.wr = allr(regs[:2]); i.rd = allr(regs[2:])
        else:
            i.wr = set(regs[0]); i.rd = allr(regs[1:])
            if mn.startswith("v_fmac") or mn.startswith("v_dot2c") or mn.startswith("v_pk_fmac") or mn.startswith("v_writelane") or i.dpp:
                i.rd |= set(regs[0])
            if mn.startswith("v_cndmask") and len(ops) == 3:
                i.rd |= set(parse_regs("vcc"))
    return i

def required(p, c):
    best = (0, "")
    def up(n, why):
        nonlocal best
        if n > best[0]: best = (n, why)
    vec_w = lambda s: {r for r in s if r[0] in "va"}
    sg = lambda s: {r for r in s if r[0] == "s"}
    if p.kind == "mfma":
        big = 12 if p.passes == 8 else 8
        if c.kind == "mfma":
            if p.wr & c.srcAB: up(big, "mfma D->AB")
            if p.wr & c.srcC:
                if not (p.wr == c.srcC and p.passes == c.passes): up(10 if p.passes == 8 else 6, "mfma D->C overlap")
            elif p.wr & c.wr:
                up(10 if p.passes == 8 else 6, "mfma D->D WAW (conservative)")
        elif c.kind in ("valu", "vld", "vst", "dsr", "dsw", "dma"):
            if p.wr & (c.rd | c.wr): up(big, "mfma D->use")
        if c.kind == "valu" and (p.srcC & c.wr): up(7 if p.passes == 8 else 3, "mfma srcC WAR")
        if c.kind in ("vld", "dsr") and (p.srcC & c.wr): up(7 if p.passes == 8 else 3, "mfma srcC WAR(load)")
    if p.kind == "valu":
        if c.kind == "mfma" and vec_w(p.wr) & c.rd: up(2, "valu->mfma")
        if c.kind == "mfma" and (p.wr & set(parse_regs("exec"))): up(4, "exec->mfma")
        if p.trans and c.kind in ("valu", "vst", "dsw") and not getattr(c, "trans", False) and p.wr & c.rd: up(1, "trans->use")
        if c.kind == "valu" and sg(p.wr) & c.rd:
            up(4 if c.mn.startswith("v_readlane") or c.mn.startswith("v_writelane") else 2, "valu sgpr->valu")
        if c.kind in ("vld", "vst", "dma") and sg(p.wr) & c.rd: up(5, "valu sgpr->vmem")
        if c.kind == "valu" and (c.mn.startswith("v_readfirstlane") or c.mn.startswith("v_readlane")) and vec_w(p.wr) & c.rd: up(1, "valu->readlane")
        if c.kind == "valu" and c.mn.startswith("v_permlane") and vec_w(p.wr) & c.rd: up(2, "valu->permlane")
        if c.kind == "valu" and c.dpp and vec_w(p.wr) & c.rd: up(2, "valu->dpp")
        if c.kind == "valu" and c.dpp and (p.wr & set(parse_regs("exec"))): up(5, "exec->dpp")
        if c.kind == "branch" and sg(p.wr) & c.rd: up(1, "valu vcc->branch (conservative)")
        if c.kind == "salu" and sg(p.wr) & c.rd: up(1, "valu sgpr->salu (conservative)")
    if p.kind == "salu":
        if ("s", 124) in p.wr and c.kind == "dma": up(1, "m0->dma")
    if p.kind == "vst" and p.wide:
        if c.kind == "valu" and p.data & c.wr: up(2, "store data WAR")
        elif c.kind in ("mfma", "vld", "dsr") and p.data & c.wr: up(1, "store data WAR")
    return best

def check(text, name="", take=(), loop_iters=2, verbose=True):
    ins = [parse(l.strip()) for l in text.split("\n") if l.strip() and not l.strip().startswith(";")]
    labels = {x.label: k for k, x in enumerate(ins) if x.label}
    n = len(ins)
    preds = [[] for _ in range(n)]
    for k, x in enumerate(ins):
        if x.kind == "end": continue
        if x.kind == "branch":
            if x.target in labels: preds[labels[x.target]].append(k)
            if x.uncond: continue
        if k + 1 < n: preds[k + 1].append(k)
    errs = []
    MAXW = 13
    for k, c in enumerate(ins):
        if c.kind in ("label", "dir", "nop", "wait", "barrier", "end"): continue
        stack = [(p, 0) for p in preds[k]]
        seen = {}
        while stack:
            p, d = stack.pop()
            if p in seen and seen[p] <= d: continue
            seen[p] = d
            pi = ins[p]
            if pi.kind not in ("label", "dir"):
                need, why = required(pi, c)
                if need > d:
                    errs.append(f"HAZARD {why}: need {need} have {d}: [{p}] {pi.text}  ->  [{k}] {c.text}")
            nd = d + pi.ws
            if nd < MAXW:
                for q in preds[p]: stack.append((q, nd))
    errs += trace_check(ins, labels, take, loop_iters)
    if verbose:
        for e in errs[:40]: print(name, e)
        print(f"check {name}: {n} lines, {len(errs)} problems")
    return errs

def trace_check(ins, labels, take, loop_iters):
    errs = []
    starts = [k for k, x in enumerate(ins) if x.label and x.label.endswith("_kernel")] or [0]
    for st in starts:
        for variant in ([()] + [tuple(t) for t in take]):
            pc = st
            vm, lg = [], []
            cnt = {}
            steps = 0
            while pc < len(ins) and steps < 30000:
                steps += 1
                x = ins[pc]
                if x.kind == "end": break
                use = x.rd | x.wr
                if x.kind not in ("label", "dir", "wait"):
                    for q, nm in ((vm, "vmcnt"), (lg, "lgkmcnt")):
                        for (kd, wr, idx) in q:
                            if wr & use:
                                if x.kind in ("vld", "dsr") and kd == x.kind and not (wr & x.rd): continue
                                errs.append(f"WAIT {nm}: [{idx}] {ins[idx].text} still pending at [{pc}] {x.text}")
                if x.kind == "wait":
                    if x.vm is not None and len(vm) > x.vm: vm = vm[len(vm) - x.vm:] if x.vm else []
                    if x.lgkm is not None:
                        if any(k == "smem" for k, _, _ in lg):
                            if x.lgkm == 0: lg = []
                        elif len(lg) > x.lgkm: lg = lg[len(lg) - x.lgkm:] if x.lgkm else []
                elif x.kind in ("vld", "vst", "dma", "vmisc"):
                    vm.append((x.kind, set(x.wr), pc))
                    if len(vm) > 63: errs.append(f"vmcnt overflow (>63) at [{pc}] {x.text}")
                elif x.kind in ("dsr", "dsw", "smem"):
                    lg.append((x.kind, set(x.wr), pc))
                if x.kind == "branch":
                    t = labels.get(x.target)
                    if x.uncond: pc = t; continue
                    if t is not None and t <= pc:
                        cnt[pc] = cnt.get(pc, 0) + 1
                        if cnt[pc] < loop_iters: pc = t; continue
                        cnt[pc] = 0
                    elif x.target in variant:
                        pc = t; continue
                pc += 1
    return list(dict.fromkeys(errs))

def kernel_desc(name, vgpr, agpr=0, sgpr=102):
    acc = (vgpr + 3) // 4 * 4
    nfv = acc + agpr if agpr else vgpr
    return f""".p2align 6
.amdhsa_kernel {name}
  .amdhsa_next_free_vgpr {nfv}
  .amdhsa_next_free_sgpr {sgpr}
  .amdhsa_accum_offset {acc}
  .amdhsa_group_segment_fixed_size 0
  .amdhsa_kernarg_size 104
  .amdhsa_user_sgpr_count 2
  .amdhsa_user_sgpr_kernarg_segment_ptr 1
  .amdhsa_system_sgpr_workgroup_id_x 1
.end_amdhsa_kernel
"""

def autopad(lines):
    out, parsed = [], []
    for ln in lines:
        c = parse(ln)
        if c.kind not in ("label", "dir", "nop", "wait", "barrier", "end"):
            d, need_extra = 0, 0
            for p in reversed(parsed):
                if p.kind == "end" or (p.kind == "branch" and p.uncond): break
                if p.kind not in ("label", "dir"):
                    need, _ = required(p, c)
                    need_extra = max(need_extra, need - d)
                d += p.ws
                if d >= 13: break
            if need_extra > 0:
                nop = f"s_nop {need_extra-1}"
                out.append(nop); parsed.append(parse(nop))
        out.append(ln); parsed.append(c)
    return out

class VM:
    def __init__(self):
        self.q = []
    def issue(self, tag):
        self.q.append(tag)
    def n_after(self, tags):
        ex = lambda t: t if not (isinstance(t, tuple) and len(t) == 2 and t[1] == "lns") else None
        has = lambda q, tags: (q in tags) if ex(q) is not None else (q[0] in tags or "lns" in tags)
        missing = [t for t in tags if not any(has(q, {t}) for q in self.q)]
        if missing: print("VM WARNING: waiting on never-issued tags", missing)
        last = -1
        for k, t in enumerate(self.q):
            if has(t, tags): last = k
        return len(self.q) - 1 - last

def icost(t):
    if isinstance(t, (list, tuple)): return sum(icost(x) for x in t)
    if t.endswith(":"): return 0
    if any(t.startswith(x) for x in TRANS): return 8
    if t.startswith("buffer_"): return COST_VMEM
    if t.startswith("ds_write"): return 12
    if t.startswith("s_nop"): return 4*(int(t.split()[1]) + 1)
    if t.startswith("s_"): return COST_SALU
    return 4
COST_VMEM, COST_SALU = 8, 4

def sched(mf, streams, budget=24):
    n = len(mf)
    if n == 0:
        o = []
        for s in streams:
            for it in s["items"]: o += list(it) if isinstance(it, (list, tuple)) else [it]
        return o
    st = []
    for s in streams:
        items = s["items"]
        lo, hi = s.get("lo", 0), min(s.get("hi", n-1), n-1)
        tot = sum(icost(x) for x in items) or 1
        acc, ideal = 0, []
        for it in items:
            ideal.append(lo + (hi - lo + 1) * acc / tot)
            acc += icost(it)
        st.append(dict(items=items, ideal=ideal, pos=0, lo=lo, hi=hi))
    out = []
    for g in range(n):
        out.append(mf[g])
        used = 0
        while True:
            cand = [s for s in st if s["pos"] < len(s["items"]) and s["lo"] <= g]
            if not cand: break
            forced = [s for s in cand if s["hi"] <= g]
            if forced: s = min(forced, key=lambda s: s["ideal"][s["pos"]])
            else:
                s = min(cand, key=lambda s: s["ideal"][s["pos"]])
                c = icost(s["items"][s["pos"]])
                idl = s["ideal"][s["pos"]]
                if idl >= g + 1.5: break
                if used + c > budget and idl > g - 1.0:
                    alt = [z for z in cand if z is not s and used + icost(z["items"][z["pos"]]) <= budget and z["ideal"][z["pos"]] < g + 1.5]
                    if not alt: break
                    s = min(alt, key=lambda z: z["ideal"][z["pos"]])
            it = s["items"][s["pos"]]
            s["pos"] += 1
            used += icost(it)
            out += list(it) if isinstance(it, (list, tuple)) else [it]
    return out

FAKE16 = [False, 8]
_sched32 = sched
def fake16(mf):
    out, cnt = [], {}
    for m in mf:
        ops = split_ops(m.split(None, 1)[1])
        k, b = ops[0][0], int(ops[0][2:].split(":")[0])
        j = cnt.get(ops[0], 0); cnt[ops[0]] = j + 1
        for q in range(2):
            sub = (2*j + q) % 4
            d = R(k, b + 4*sub, 4)
            c = d
            if ops[3] != ops[0]:
                cnt["c" + ops[0]] = ops[3]
            if j < 2 and ("c" + ops[0]) in cnt:
                cc = cnt["c" + ops[0]]
                c = cc if cc == "0" else R(cc[0], int(cc[2:].split(":")[0]) + 4*sub, 4)
            bb = ops[2] if q == 0 else R(ops[2][0], int(ops[2][2:].split(":")[0]) ^ 4, 4)
            out.append(f"v_mfma_f32_16x16x32_bf16 {d}, {ops[1]}, {bb}, {c}")
    return out
def sched(mf, streams, budget=24):
    if not FAKE16[0] or not mf: return _sched32(mf, streams, budget)
    n = len(mf)
    st = [dict(items=s["items"], lo=2*s.get("lo", 0), hi=2*min(s.get("hi", n-1), n-1) + 1) for s in streams]
    return _sched32(fake16(mf), st, FAKE16[1])

def _cls(t):
    x = t[0] if isinstance(t, (list, tuple)) else t
    return 1 if x.startswith("v_") else 0
def c16(t, first):
    if isinstance(t, (list, tuple)):
        return sum(c16(x, first and k == 0) for k, x in enumerate(t))
    if t.endswith(":"): return 0
    if any(t.startswith(x) for x in TRANS): return 8
    if t.startswith("s_nop"): return 4*(int(t.split()[1]) + 1)
    if t.startswith("s_"): return 0 if first else 2
    if t.startswith("buffer_") or t.startswith("global_"): return 6
    if t.startswith("ds_write"): return 12
    return 4
def sched16(mf, streams, budget=8):
    n = len(mf)
    if n == 0:
        o = []
        for s in streams:
            for it in s["items"]: o += list(it) if isinstance(it, (list, tuple)) else [it]
        return o
    st = []
    for s in streams:
        items = s["items"]
        lo, hi = s.get("lo", 0), min(s.get("hi", n-1), n-1)
        tot = sum(max(1, c16(x, False)) for x in items) or 1
        acc, ideal = 0, []
        for it in items:
            ideal.append(lo + (hi - lo + 1) * acc / tot)
            acc += max(1, c16(it, False))
        st.append(dict(items=items, ideal=ideal, pos=0, lo=lo, hi=hi, q=[]))
    out = []
    for g in range(n):
        out.append(mf[g])
        used, nonv = 0, 0
        while True:
            cand = [s for s in st if s["pos"] < len(s["items"]) and s["lo"] <= g]
            if not cand: break
            cost = lambda z: c16(z["items"][z["pos"]], nonv == 0 and not z["q"])
            forced = [s for s in cand if s["hi"] <= g]
            if forced: s = min(forced, key=lambda s: s["ideal"][s["pos"]])
            else:
                s = min(cand, key=lambda s: s["ideal"][s["pos"]])
                idl = s["ideal"][s["pos"]]
                if idl >= g + 2.5: break
                if used + cost(s) > budget and (idl > g - 2.0 and used > 0):
                    alt = [z for z in cand if z is not s and used + cost(z) <= budget and z["ideal"][z["pos"]] < g + 2.5]
                    if not alt: break
                    s = min(alt, key=lambda z: z["ideal"][z["pos"]])
            it = s["items"][s["pos"]]
            used += cost(s)
            if _cls(it) == 0: nonv += 1
            s["pos"] += 1
            s["q"].append(it)
        while any(s["q"] for s in st):
            heads = [s for s in st if s["q"]]
            s = min(heads, key=lambda z: _cls(z["q"][0]))
            it = s["q"].pop(0)
            out += list(it) if isinstance(it, (list, tuple)) else [it]
    return out

import subprocess, tempfile, os
def inst_sizes(lines):
    txt = '.amdgcn_target "amdgcn-amd-amdhsa--gfx950"\n.text\n' + "\n".join(lines) + "\n"
    d = tempfile.mkdtemp()
    open(d + "/a.s", "w").write(txt)
    subprocess.run(["clang", "-x", "assembler", "-target", "amdgcn-amd-amdhsa", "-mcpu=gfx950", "-c", d + "/a.s", "-o", d + "/a.o"], check=True)
    out = subprocess.run(["llvm-objdump", "-d", "--mcpu=gfx950", d + "/a.o"], capture_output=True, text=True).stdout
    sz = [4*len(l.split("//")[1].split(":")[1].split("<")[0].split()) for l in out.split("\n") if "//" in l and l.startswith("\t")]
    res, k = [], 0
    for ln in lines:
        if ln.endswith(":") or ln.startswith("."): res.append(0)
        else: res.append(sz[k]); k += 1
    assert k == len(sz), (k, len(sz))
    return res
_PROMO = ("v_add_f32", "v_sub_f32", "v_mul_f32", "v_max_f32", "v_min_f32", "v_exp_f32", "v_mov_b32", "v_add_u32", "v_lshlrev_b32", "v_and_b32", "v_xor_b32", "v_or_b32",
          "v_lshrrev_b32", "v_rcp_f32", "v_sqrt_f32", "v_fmac_f32", "v_cmp_lt_f32", "v_cmp_ne_u32", "v_sub_u32", "v_subrev_u32")
def align8(lines, nop=False):
    sz = inst_sizes(lines)
    out = list(lines)
    off, cand, nfix, nmiss = 0, None, 0, 0
    for k, ln in enumerate(lines):
        s = sz[k]
        if s == 0: continue
        if s >= 8:
            if off % 8 == 4:
                if cand is not None:
                    mn = out[cand].split()[0]
                    out[cand] = out[cand].replace(mn, mn + "_e64", 1); off += 4; nfix += 1
                elif nop:
                    out[k] = "s_nop 0\n" + out[k]; off += 4; nmiss += 1
                else: nmiss += 1
            cand = None
        elif ln.split()[0] in _PROMO: cand = k
        off += s
    print(f"align8: widened {nfix}, {'padded' if nop else 'left misaligned'} {nmiss}")
    return [x for l in out for x in l.split("\n")]
```
